```python
import torch

def _softmax(x, axis=-1):
    return torch.softmax(x, dim=axis)
def _gelu(x):
    return torch.nn.functional.gelu(x, approximate="tanh")
def _silu(x):
    return torch.nn.functional.silu(x)
def _sigmoid(x):
    return torch.sigmoid(x)
def _layernorm(x, axis=-1, eps=1e-5):
    m = x.mean(dim=axis, keepdim=True)
    v = x.var(dim=axis, keepdim=True, unbiased=False)
    return (x - m) / torch.sqrt(v + eps)
def _scatter_add(tgt, idx, src, axis=0):
    return tgt.clone().index_add_(axis, idx, src)
def _segment_sum(src, seg, n):
    out = torch.zeros((n,) + src.shape[1:], dtype=src.dtype)
    return out.index_add_(0, seg, src)
def _pad(x, pw):
    flat = tuple(v for pair in reversed(pw) for v in pair)
    return torch.nn.functional.pad(x, flat)

kernel_name = 'sequential_preLN__sliding_block__mixer_s_mlp__prompt'

def setup_inputs():

    _w = (lambda a: (lambda t: t.to(torch.bfloat16) if t.is_floating_point() else t)(torch.as_tensor(a)))
    def _A_setup():
        B, S, D = 1, 2048, 512
        return {
            "x": _w((lambda *s: torch.randn(*s, dtype=torch.bfloat16) * 0.05)(B, S, D)),
            "wqkv": _w((lambda *s: torch.randn(*s, dtype=torch.bfloat16) * 0.05)(D, 3 * D)),
            "wo": _w((lambda *s: torch.randn(*s, dtype=torch.bfloat16) * 0.05)(D, D)),
        }
    _A_in = _A_setup()

    def _B_setup():
        B, S, D, F = 1, 2048, 512, 1792
        return {
            "x":  _w((lambda *s: torch.randn(*s, dtype=torch.bfloat16) * 0.05)(B, S, D)),
            "w1": _w((lambda *s: torch.randn(*s, dtype=torch.bfloat16) * 3.2)(D, D) * (D ** -0.5)),
            "w2": _w((lambda *s: torch.randn(*s, dtype=torch.bfloat16) * 3.2)(D, D) * (D ** -0.5)),
            "w3": _w((lambda *s: torch.randn(*s, dtype=torch.bfloat16) * 3.2)(D, F) * (D ** -0.5)),
            "w4": _w((lambda *s: torch.randn(*s, dtype=torch.bfloat16) * 3.2)(F, D) * (F ** -0.5)),
        }
    _B_in = _B_setup()

    return {
        "A_x": _A_in["x"],
        "A_wqkv": _A_in["wqkv"],
        "A_wo": _A_in["wo"],
        "B_x": _B_in["x"],
        "B_w1": _B_in["w1"],
        "B_w2": _B_in["w2"],
        "B_w3": _B_in["w3"],
        "B_w4": _B_in["w4"],
    }

def reference(A_x, A_wqkv, A_wo, B_x, B_w1, B_w2, B_w3, B_w4):
    def _A_ref(x, wqkv, wo):
        B, S, D = x.shape
        H = 32; Dh = D // H; W = 256
        qkv = (lambda x, *d: x.permute(*d))((x @ wqkv).reshape(B, S, 3, H, Dh), 2, 0, 3, 1, 4)
        q, k, v = qkv[0], qkv[1], qkv[2]
        scores = torch.einsum("bhqd,bhkd->bhqk", q, k) * (Dh ** -0.5)
        idx = torch.arange(S)
        mask = (idx[:, None] - idx[None, :] >= 0) & (idx[:, None] - idx[None, :] < W)
        scores = torch.where(mask[None, None], scores, -1e9)
        p = _softmax(scores, axis=-1)
        o = torch.einsum("bhqk,bhkd->bhqd", p, v)
        return (lambda x, *d: x.permute(*d))(o, 0, 2, 1, 3).reshape(B, S, D) @ wo

    def _B_ref(x, w1, w2, w3, w4):
        B, S, D = x.shape
        h = _gelu(_layernorm(x, axis=-1) @ w1)
        c = D // 4
        g0 = _pad(h[:, :, 0*c:1*c], ((0, 0), (1, 0), (0, 0)))[:, :S, :]
        g1 = _pad(h[:, :, 1*c:2*c], ((0, 0), (0, 1), (0, 0)))[:, 1:, :]
        g2 = _pad(h[:, :, 2*c:3*c], ((0, 0), (2, 0), (0, 0)))[:, :S, :]
        g3 = _pad(h[:, :, 3*c:   ], ((0, 0), (0, 2), (0, 0)))[:, 2:, :]
        hs = torch.concatenate([g0, g1, g2, g3], axis=-1) @ w2
        x1 = x + hs
        h2 = _gelu(_layernorm(x1, axis=-1) @ w3) @ w4
        return x1 + h2

    x = A_x
    h = x + _A_ref(_layernorm(x, axis=-1), A_wqkv, A_wo)
    h2 = h + _B_ref(_layernorm(h, axis=-1), B_w1, B_w2, B_w3, B_w4)
    return h2
```

```python
import re

TRANS = ("v_exp_f32", "v_log_f32", "v_rcp_f32", "v_rsq_f32", "v_sqrt_f32", "v_sin_f32", "v_cos_f32",
         "v_rcp_iflag_f32")


def v(i, n=1):
    return f"v{i}" if n == 1 else f"v[{i}:{i+n-1}]"


def a(i, n=1):
    return f"a{i}" if n == 1 else f"a[{i}:{i+n-1}]"


def s(i, n=1):
    return f"s{i}" if n == 1 else f"s[{i}:{i+n-1}]"


def r(reg, n=1):
    return a(reg - 256, n) if reg >= 256 else v(reg, n)


_RE = re.compile(r"^(-|abs\(|\|)?([vas])(?:(\d+)|\[(\d+):(\d+)\])\)?\|?$")


def regs_of(opnd):
    o = opnd.strip()
    if o in ("vcc", "exec"):
        return {(o, 0), (o, 1)}
    if o in ("vcc_lo", "exec_lo"):
        return {(o[:-3], 0)}
    if o in ("vcc_hi", "exec_hi"):
        return {(o[:-3], 1)}
    if o == "m0":
        return {("m0", 0)}
    m = _RE.match(o)
    if not m:
        return set()
    k = m.group(2)
    if m.group(3) is not None:
        lo = hi = int(m.group(3))
    else:
        lo, hi = int(m.group(4)), int(m.group(5))
    if k == "a":
        return {("v", 256 + i) for i in range(lo, hi + 1)}
    return {(k, i) for i in range(lo, hi + 1)}


class Ins:
    __slots__ = ("op", "ops", "mods", "cls", "rd", "wr", "token", "comment", "passes", "srcc", "srcab",
                 "raw", "label", "target", "waits")

    def __init__(self, op, ops=(), mods="", token=None, comment=None):
        self.op = op
        self.ops = [str(o) for o in ops]
        self.mods = mods
        self.token = token
        self.comment = comment
        self.passes = 0
        self.srcc = set()
        self.srcab = set()
        self.raw = None
        self.label = None
        self.target = None
        self.waits = None
        self._classify()

    def text(self):
        if self.raw is not None:
            return self.raw
        t = "  " + self.op
        if self.ops:
            t += " " + ", ".join(self.ops)
        if self.mods:
            t += " " + self.mods
        if self.comment:
            t += "   ; " + self.comment
        return t

    def _classify(self):
        op, ops = self.op, self.ops
        R = lambda idxs: set().union(*[regs_of(ops[i]) for i in idxs]) if idxs else set()
        n = len(ops)
        self.rd, self.wr = set(), set()
        if op.startswith("v_mfma"):
            self.cls = "mfma"
            self.wr = R([0])
            self.srcab = R([1, 2])
            self.srcc = R([3])
            self.rd = self.srcab | self.srcc
            if "32x32x16" in op:
                self.passes = 8
            elif "16x16x32" in op:
                self.passes = 4
            else:
                raise ValueError(op)
        elif op.startswith("v_"):
            self.cls = "valu"
            if op.startswith("v_cmp"):
                self.wr = R([0])
                self.rd = R(range(1, n))
                if op.startswith("v_cmpx"):
                    self.wr |= regs_of("exec")
            elif op.startswith("v_permlane16_swap") or op.startswith("v_permlane32_swap"):
                self.wr = R([0, 1])
                self.rd = R([0, 1])
            elif op.startswith(("v_add_co", "v_sub_co", "v_addc_co", "v_subb_co")):
                self.wr = R([0, 1])
                self.rd = R(range(2, n))
            elif op == "v_nop":
                pass
            else:
                self.wr = R([0])
                self.rd = R(range(1, n))
                if op.startswith(("v_fmac", "v_dot2c", "v_pk_fmac", "v_writelane")) or "dpp" in op or \
                        "row_" in self.mods or "quad_perm" in self.mods:
                    self.rd |= R([0])
                if op.startswith("v_cndmask") and n == 3:
                    self.rd |= regs_of("vcc")
        elif op.startswith("ds_"):
            self.cls = "ds"
            if op.startswith(("ds_read", "ds_bpermute", "ds_permute", "ds_swizzle")):
                self.wr = R([0])
                self.rd = R(range(1, n))
            else:
                self.rd = R(range(n))
        elif op.startswith(("buffer_", "global_")):
            self.cls = "vmem"
            lds = " lds" in " " + self.mods or op.startswith("global_load_lds")
            if op.startswith("buffer_load"):
                if lds:
                    self.rd = R(range(n)) | {("m0", 0)}
                else:
                    self.wr = R([0])
                    self.rd = R(range(1, n))
            elif op.startswith("global_load"):
                if lds:
                    self.rd = R(range(n)) | {("m0", 0)}
                else:
                    self.wr = R([0])
                    self.rd = R(range(1, n))
            elif "atomic" in op:
                self.rd = R(range(n))
                if "sc0" in self.mods:
                    self.wr = R([0])
            else:
                self.rd = R(range(n))
        elif op.startswith("s_"):
            self.cls = "salu"
            if op in ("s_waitcnt", "s_nop", "s_barrier", "s_endpgm", "s_sleep", "s_setprio", "s_branch") or \
                    op.startswith("s_cbranch"):
                self.cls = "ctl"
                if op.startswith("s_cbranch") or op == "s_branch":
                    self.target = ops[0]
            elif op.startswith(("s_load", "s_memtime", "s_memrealtime", "s_buffer_load")):
                self.cls = "smem"
                self.wr = R([0])
                self.rd = R(range(1, n))
            elif op.startswith("s_cmp") or op.startswith("s_bitcmp"):
                self.rd = R(range(n))
            elif op.startswith("s_getreg") or op.startswith("s_getpc"):
                self.wr = R([0])
            else:
                self.wr = R([0])
                self.rd = R(range(1, n))
                if "saveexec" in op:
                    self.wr |= regs_of("exec")
                    self.rd |= regs_of("exec")
                if op.startswith(("s_addk", "s_mulk")):
                    self.rd |= R([0])
        else:
            self.cls = "other"


class Prog:
    def __init__(self):
        self.ins = []
        self._tok = 0

    def emit(self, op, *ops, mods="", token=None, c=None):
        i = Ins(op, ops, mods, token, c)
        self.ins.append(i)
        return i

    def __getattr__(self, name):
        if name.startswith(("v_", "s_", "ds_", "buffer_", "global_")):
            return lambda *ops, **kw: self.emit(name, *ops, **kw)
        raise AttributeError(name)

    def add(self, items):
        if isinstance(items, Ins):
            self.ins.append(items)
        else:
            self.ins.extend(items)

    def label(self, name):
        i = Ins("label")
        i.cls = "label"
        i.label = name
        i.raw = name + ":"
        self.ins.append(i)
        return i

    def raw(self, text):
        i = Ins("raw")
        i.cls = "raw"
        i.raw = text
        self.ins.append(i)
        return i

    def comment(self, text):
        return self.raw("  ; " + text)

    def new_token(self):
        self._tok += 1
        return self._tok

    def wait_vm(self, token):
        i = Ins("waittok")
        i.cls = "waittok"
        i.waits = ("vm", token)
        self.ins.append(i)
        return i

    def wait_ds(self, token):
        i = Ins("waittok")
        i.cls = "waittok"
        i.waits = ("ds", token)
        self.ins.append(i)
        return i

    def wait(self, vm=None, lgkm=None):
        parts = []
        if vm is not None:
            parts.append(f"vmcnt({vm})")
        if lgkm is not None:
            parts.append(f"lgkmcnt({lgkm})")
        i = Ins("s_waitcnt", [" ".join(parts)])
        i.waits = ("explicit", vm, lgkm)
        self.ins.append(i)
        return i

    def sub(self):
        p = Prog()
        p._tok = None
        p.new_token = self.new_token
        return p

    def finalize(self):
        self.ins = insert_waits(self.ins)
        self.ins = insert_nops(self.ins)
        return "\n".join(i.text() for i in self.ins) + "\n"


def mk_wait(vm, lgkm):
    parts = []
    if vm is not None:
        parts.append(f"vmcnt({vm})")
    if lgkm is not None:
        parts.append(f"lgkmcnt({lgkm})")
    i = Ins("s_waitcnt", [" ".join(parts)])
    i.waits = ("explicit", vm, lgkm)
    return i


def insert_waits(ins):
    out = []
    vm, ds = [], []
    smem = set()
    snap = {}
    seen_labels = set()
    for i in ins:
        if i.cls == "label":
            seen_labels.add(i.label)
            if i.label in snap:
                for (svm, sds, ssm, nvm, nds) in snap.pop(i.label):
                    newvm = [e for e in vm if not any(e is x for x in svm)]
                    newds = [e for e in ds if not any(e is x for x in sds)]
                    if newvm:
                        vm = [(e[0], e[1], True) for e in svm] + [(e[0], e[1], True) for e in newvm]
                    elif len(svm) > len(vm):
                        vm = list(svm)
                    if newds:
                        ds = [(e[0], e[1], True) for e in sds] + [(e[0], e[1], True) for e in newds]
                    elif len(sds) > len(ds):
                        ds = list(sds)
                    smem |= ssm
            out.append(i)
            continue
        if i.cls in ("raw",):
            out.append(i)
            continue
        need_vm = need_ds = None
        if i.cls == "waittok":
            kind, tok = i.waits
            q = vm if kind == "vm" else ds
            idx = [k for k, e in enumerate(q) if e[1] == tok]
            if idx:
                n = len(q) - 1 - idx[-1]
                if any(e[2] for e in q):
                    n = 0
                if kind == "vm":
                    need_vm = n
                else:
                    need_ds = n
        else:
            touched = i.rd | i.wr
            for k, e in enumerate(vm):
                if e[0] & touched:
                    need_vm = len(vm) - 1 - k
            if need_vm is not None and any(e[2] for e in vm):
                need_vm = 0
            for k, e in enumerate(ds):
                if e[0] & touched:
                    need_ds = len(ds) - 1 - k
            if need_ds is not None and any(e[2] for e in ds):
                need_ds = 0
            if smem & touched:
                need_ds = 0
        if need_ds is not None and smem:
            need_ds = 0
        if need_vm is not None and need_vm > 62:
            need_vm = 62
        if need_ds is not None and need_ds > 14:
            need_ds = 14
        if need_vm is not None or need_ds is not None:
            out.append(mk_wait(need_vm, need_ds))
            if need_vm is not None:
                vm = vm[len(vm) - need_vm:] if need_vm else []
            if need_ds is not None:
                ds = ds[len(ds) - need_ds:] if need_ds else []
                if need_ds == 0:
                    smem = set()
        if i.cls == "waittok":
            continue
        if i.op == "s_waitcnt":
            _, wvm, wl = i.waits
            if wvm is not None and len(vm) > wvm:
                vm = vm[len(vm) - wvm:] if wvm else []
            if wl is not None:
                if wl == 0:
                    ds = []
                    smem = set()
                elif not smem and len(ds) > wl:
                    ds = ds[len(ds) - wl:]
        elif i.cls == "vmem":
            vm.append((set(i.wr), i.token, False))
        elif i.cls == "ds":
            ds.append((set(i.wr), i.token, False))
        elif i.cls == "smem":
            smem |= i.wr
        if i.target is not None and i.target not in seen_labels:
            snap.setdefault(i.target, []).append((list(vm), list(ds), set(smem), len(vm), len(ds)))
        out.append(i)
    return out


def _states(i):
    if i.cls in ("label", "raw"):
        return 0
    if i.op == "s_nop":
        return int(i.ops[0]) + 1
    return 1


def _need(p, c):
    n = 0
    vw = {x for x in p.wr if x[0] == "v"}
    if p.cls == "valu":
        sw = {x for x in p.wr if x[0] in ("s", "vcc")}
        if c.cls == "mfma" and vw & c.rd:
            n = max(n, 2)
        if c.cls == "valu":
            if c.op.startswith("v_permlane") and vw & c.rd:
                n = max(n, 2)
            if c.op.startswith(("v_readlane", "v_readfirstlane")) and vw & c.rd:
                n = max(n, 1)
            if ("dpp" in c.op or "row_" in c.mods or "quad_perm" in c.mods) and vw & c.rd:
                n = max(n, 2)
            if p.op.startswith(TRANS) and (vw & c.rd):
                n = max(n, 1)
            if sw & c.rd:
                n = max(n, 4 if c.op.startswith(("v_readlane", "v_writelane")) else 2)
            if p.op.startswith("v_dot2") and (vw & (c.rd | c.wr)):
                n = max(n, 3)
            if ("op_sel" in p.mods and not p.op.startswith("v_pk_")) or "sdwa" in p.op or "dst_sel" in p.mods:
                if vw & (c.rd | c.wr):
                    n = max(n, 1)
        if c.cls == "vmem" and sw & c.rd:
            n = max(n, 5)
        if c.cls in ("salu", "smem", "ctl") and sw & c.rd:
            n = max(n, 1)
        if any(x[0] == "exec" for x in p.wr):
            if c.cls == "mfma" or c.op.startswith(("v_permlane", "v_readlane", "v_readfirstlane", "v_writelane")):
                n = max(n, 4)
            if "dpp" in c.op or "row_" in c.mods:
                n = max(n, 5)
    elif p.cls == "mfma":
        big = p.passes == 8
        if c.cls == "mfma":
            if vw & c.srcab:
                n = max(n, 12 if big else 8)
            if vw & c.srcc:
                if not (c.srcc == vw and c.passes == p.passes):
                    n = max(n, 10 if big else 6)
            elif vw & c.wr:
                n = max(n, 10 if big else 6)
        elif c.cls in ("valu", "vmem", "ds"):
            if vw & (c.rd | c.wr):
                n = max(n, 12 if big else 8)
            if c.cls == "valu" and p.srcc & c.wr:
                n = max(n, 7 if big else 3)
            if c.cls in ("vmem", "ds") and p.srcc & c.wr:
                n = max(n, 7 if big else 3)
    elif p.cls == "salu":
        if ("m0", 0) in p.wr and c.cls == "vmem" and ("m0", 0) in c.rd:
            n = max(n, 1)
    elif p.cls == "vmem":
        if ("store" in p.op) and ("x4" in p.op or "x3" in p.op):
            data = regs_of(p.ops[0]) if p.op.startswith("buffer") else regs_of(p.ops[1])
            if data & c.wr:
                n = max(n, 2)
    return n


def insert_nops(ins):
    out = []
    hist = []
    snap = {}
    cur = [[]]
    seen = set()
    W = 24
    for i in ins:
        if i.cls == "label":
            seen.add(i.label)
            if i.label in snap:
                cur = cur + snap.pop(i.label)
            out.append(i)
            continue
        if i.cls == "raw":
            out.append(i)
            continue
        need = 0
        for h in cur:
            d = 0
            for p in reversed(h):
                k = _need(p, i)
                if k > d:
                    need = max(need, k - d)
                d += _states(p)
                if d >= 20:
                    break
        while need > 0:
            k = min(need, 16)
            nop = Ins("s_nop", [str(k - 1)])
            out.append(nop)
            for h in cur:
                h.append(nop)
            need -= k
        out.append(i)
        for h in cur:
            h.append(i)
            if len(h) > W:
                del h[0]
        if len(cur) > 1:
            base = cur[0]
            cur = [base] + [h for h in cur[1:] if not (len(h) >= W and len(base) >= W and
                                                       all(x is y for x, y in zip(h[-W:], base[-W:])))]
        if i.target is not None and i.target not in seen:
            snap.setdefault(i.target, []).extend([list(h) for h in cur])
        if i.op in ("s_branch", "s_endpgm"):
            cur = [[]]
    return out


def interleave(main, fill, start=0, per=None):
    out = []
    n = len(main) - start
    k = 0
    for idx, m in enumerate(main):
        out.extend(m if isinstance(m, list) else [m])
        if idx >= start:
            j = idx - start + 1
            tgt = len(fill) * j // n if per is None else min(len(fill), per * j)
            while k < tgt:
                f = fill[k]
                out.extend(f if isinstance(f, list) else [f])
                k += 1
    while k < len(fill):
        f = fill[k]
        out.extend(f if isinstance(f, list) else [f])
        k += 1
    return out
```

```python
import math
import struct
import sys
from asmlib import *

NAME = "sequential_preLN__sliding_block__mixer_s_mlp__prompt"
KB = 1024

RGS = 640 * KB
O_OFF, H_OFF, T_OFF, X1_OFF, U_OFF = 0, 64 * KB, 128 * KB, 192 * KB, 256 * KB
K_OFF, V_OFF = 480 * KB, 544 * KB
STH_OFF, STX_OFF = 608 * KB, 612 * KB
TH_OFF = 616 * KB
FL_OFF = 632 * KB
FKV_OFF = 633 * KB
FHALO_OFF = 637 * KB
FXCC_OFF = 638 * KB
PH_O, PH_H, PH_T, PH_X1, PH_U = range(5)
WS_BYTES = 32 * RGS
OOB = 0x80000000
MISC = 128 * KB


def f2u(x):
    return "0x%08x" % struct.unpack("<I", struct.pack("<f", x))[0]


LOG2E = 1.4426950408889634
EPS = 1e-5
NEG_BIG = -1e30


class Alloc:
    def __init__(self, lo, hi):
        self.free = set(range(lo, hi))

    def get(self, n=1, align=None):
        align = align or (1 if n == 1 else 2)
        for b in sorted(self.free):
            if b % align == 0 and all((b + i) in self.free for i in range(n)):
                for i in range(n):
                    self.free.remove(b + i)
                return b
        raise RuntimeError(f"out of registers for {n}")

    def put(self, b, n=1):
        for i in range(n):
            assert (b + i) not in self.free, (b, i)
            self.free.add(b + i)


class Gen:
    def __init__(self, opts):
        self.o = opts
        self.p = Prog()
        self.V = Alloc(1, 256)
        self.A = Alloc(256, 512)
        self.S = Alloc(4, 100)
        self.nlab = 0
        self.nstamp = 0

    def lab(self, base):
        self.nlab += 1
        return f"L_{base}_{self.nlab}"

    def srd(self, ptr, nbytes):
        p = self.p
        d = self.S.get(4, 4)
        p.s_mov_b32(s(d), s(ptr))
        p.s_and_b32(s(d + 1), s(ptr + 1), "0xffff")
        p.s_mov_b32(s(d + 2), nbytes)
        p.s_mov_b32(s(d + 3), "0x20000")
        return d

    def stamp(self, name):
        if not self.o.get("stamps"):
            return
        p = self.p
        k = self.nstamp
        self.nstamp += 1
        self.stamp_names.append(name)
        p.s_memtime(s(self.sT0, 2))
        p.wait(lgkm=0)
        p.v_writelane_b32(v(self.vStamp), s(self.sT0), k)

    def st_mods(self, extra=""):
        return (extra + " sc1").strip()

    def dma(self, q, voff, srd, soff_expr, lds_expr, token=None, mods=""):
        sr, sc = soff_expr
        lr, lc = lds_expr
        if lr is None:
            q.s_mov_b32("m0", lc)
        else:
            q.s_add_u32("m0", s(lr), lc)
        if sr is None:
            q.s_mov_b32(s(self.sTmp), sc)
            so = s(self.sTmp)
        elif sc == 0:
            so = s(sr)
        else:
            q.s_add_u32(s(self.sTmp), s(sr), sc)
            so = s(self.sTmp)
        q.buffer_load_dwordx4(v(voff), s(srd, 4), so, mods=("offen " + mods + " lds").replace("  ", " "), token=token)

    def set_flag(self, voff_flag, token_wait=None, sc1=True):
        p = self.p
        if token_wait is None:
            p.wait(vm=0)
        else:
            p.wait_vm(token_wait)
        p.s_mov_b64("exec", 1)
        p.buffer_store_dword(v(self.vNonce), v(voff_flag), s(self.sWS, 4), 0, mods="offen sc1" if sc1 else "offen")
        p.s_mov_b64("exec", -1)

    def poll(self, voff, code):
        p = self.p
        t = self.V.get()
        L, D = self.lab("poll"), self.lab("polled")
        p.s_mov_b32(s(self.sCnt), 1 << 16)
        p.label(L)
        p.buffer_load_dword(v(t), v(voff), s(self.sWS, 4), 0, mods="offen sc1")
        p.wait(vm=0)
        p.v_cmp_ne_u32("vcc", s(self.sNonce), v(t))
        p.s_nop(0)
        p.s_cbranch_vccz(D)
        p.s_sub_u32(s(self.sCnt), s(self.sCnt), 1)
        p.s_cmp_lg_u32(s(self.sCnt), 0)
        p.s_cbranch_scc1(L)
        if self.o.get("dbg"):
            p.v_mov_b32(v(t), code)
            p.v_mov_b32(v(self.vTmp), 16)
            p.buffer_store_dword(v(t), v(self.vTmp), s(self.sDBG, 4), 0, mods="offen")
            p.wait(vm=0)
        p.label(D)
        self.V.put(t)

    def transpose4(self, b):
        p = self.p
        for i in range(2):
            p.v_permlane16_swap_b32(v(b + i), v(b + 2 + i))
            p.v_permlane16_swap_b32(v(b + 4 + i), v(b + 6 + i))
        for i in range(2):
            p.v_permlane32_swap_b32(v(b + i), v(b + 4 + i))
            p.v_permlane32_swap_b32(v(b + 2 + i), v(b + 6 + i))

    def prologue(self):
        p, S, V = self.p, self.S, self.V
        self.stamp_names = []
        p.s_cmp_ge_u32(s(2), 256)
        p.s_cbranch_scc1("L_end")
        ka = S.get(16, 4)
        kb = S.get(8, 4)
        p.s_load_dwordx16(s(ka, 16), s(0, 2), 0)
        p.s_load_dwordx4(s(kb, 4), s(0, 2), 64)
        p.s_load_dwordx2(s(kb + 4, 2), s(0, 2), 80)
        self.sW, self.sRG, self.sCB, self.sNB = S.get(), S.get(), S.get(), S.get()
        self.sTmp, self.sTmp2, self.sCnt, self.sNonce = S.get(), S.get(), S.get(), S.get()
        self.sRGB = S.get()
        self.sT0 = S.get(2, 2)
        self.vTmp = V.get()
        self.vL16, self.vJ, self.vG, self.vNonce = V.get(), V.get(), V.get(), V.get()
        if self.o.get("stamps"):
            self.vStamp = V.get()
            p.v_mov_b32(v(self.vStamp), 0)
        p.v_lshrrev_b32(v(self.vTmp), 6, v(0))
        p.v_and_b32(v(0), 63, v(0))
        p.v_readfirstlane_b32(s(self.sW), v(self.vTmp))
        p.s_lshr_b32(s(3), s(2), 3)
        p.s_and_b32(s(self.sCB), s(3), 7)
        p.s_and_b32(s(self.sNB), s(3), 15)
        p.s_lshr_b32(s(3), s(3), 3)
        p.s_and_b32(s(self.sRG), s(2), 7)
        p.s_lshl_b32(s(self.sRG), s(self.sRG), 2)
        p.s_add_u32(s(self.sRG), s(self.sRG), s(3))
        p.s_mul_i32(s(self.sRGB), s(self.sRG), RGS)
        p.v_lshlrev_b32(v(self.vL16), 4, v(0))
        p.v_and_b32(v(self.vJ), 15, v(0))
        p.v_lshrrev_b32(v(self.vG), 4, v(0))
        self.stamp("start")
        p.wait(lgkm=0)
        self.sX = self.srd(ka + 0, 2048 * 512 * 2)
        self.sWQKV = self.srd(ka + 2, 512 * 1536 * 2)
        self.sWO = self.srd(ka + 4, 512 * 512 * 2)
        self.sW1 = self.srd(ka + 8, 512 * 512 * 2)
        self.sW2 = self.srd(ka + 10, 512 * 512 * 2)
        self.sW3 = self.srd(ka + 12, 512 * 1792 * 2)
        self.sW4 = self.srd(ka + 14, 1792 * 512 * 2)
        self.sOUT = self.srd(kb + 0, 2048 * 512 * 2)
        self.sDBG = self.srd(kb + 2, 256)
        self.sWS = self.srd(kb + 4, WS_BYTES + (8 << 20 if self.o.get("stamps") else 0))
        S.put(ka, 16)
        S.put(kb, 8)
        L = self.lab("nononce")
        p.s_or_b32(s(self.sTmp), s(2), s(self.sW))
        p.s_cmp_lg_u32(s(self.sTmp), 0)
        p.s_cbranch_scc1(L)
        p.s_memrealtime(s(self.sT0, 2))
        p.wait(lgkm=0)
        p.s_or_b32(s(self.sTmp), s(self.sT0), 1)
        p.v_mov_b32(v(self.vNonce), s(self.sTmp))
        p.v_mov_b32(v(self.vTmp), 0)
        p.s_mov_b64("exec", 1)
        p.buffer_store_dword(v(self.vNonce), v(self.vTmp), s(self.sDBG, 4), 0, mods="offen sc1")
        p.s_mov_b64("exec", -1)
        p.wait(vm=0)
        p.label(L)

    def get_nonce(self):
        p = self.p
        L, D = self.lab("npoll"), self.lab("ndone")
        p.v_mov_b32(v(self.vTmp), 0)
        p.s_mov_b32(s(self.sCnt), 1 << 16)
        p.label(L)
        p.buffer_load_dword(v(self.vNonce), v(self.vTmp), s(self.sDBG, 4), 0, mods="offen sc1")
        p.wait(vm=0)
        p.v_readfirstlane_b32(s(self.sNonce), v(self.vNonce))
        p.s_nop(0)
        p.s_cmp_lg_u32(s(self.sNonce), 0)
        p.s_cbranch_scc1(D)
        p.s_sub_u32(s(self.sCnt), s(self.sCnt), 1)
        p.s_cmp_lg_u32(s(self.sCnt), 0)
        p.s_cbranch_scc1(L)
        p.label(D)

    def w_dma_voff(self, dst, rowstride, mapping, qpar_reg=None, qconst=None, swz32=False):
        p, V = self.p, self.V
        rho, pos, t, f = V.get(), V.get(), V.get(), V.get()
        p.v_lshrrev_b32(v(rho), 3, v(0))
        p.v_and_b32(v(pos), 7, v(0))
        if qconst is None:
            p.s_mov_b32(s(self.sTmp2), s(self.sW))
        else:
            p.s_mov_b32(s(self.sTmp2), qconst)
        p.v_bfe_u32(v(f), v(rho), 1, 1)
        if swz32:
            p.v_lshlrev_b32(v(f), 1, v(f))
        else:
            p.s_and_b32(s(self.sTmp), s(self.sTmp2), 1)
            p.s_lshl_b32(s(self.sTmp), s(self.sTmp), 1)
            p.v_or_b32(v(f), s(self.sTmp), v(f))
        p.v_lshlrev_b32(v(f), 1, v(f))
        p.v_xor_b32(v(pos), v(pos), v(f))
        p.v_lshlrev_b32(v(pos), 4, v(pos))
        if mapping == "nat":
            p.s_lshl_b32(s(self.sTmp), s(self.sTmp2), 3)
            p.v_add_u32(v(t), s(self.sTmp), v(rho))
        elif mapping == "m32":
            p.v_and_b32(v(t), 3, v(rho))
            p.v_lshrrev_b32(v(f), 2, v(rho))
            p.v_lshl_add_u32(v(t), v(f), 3, v(t))
            p.s_lshr_b32(s(self.sTmp), s(self.sTmp2), 1)
            p.s_lshl_b32(s(self.sTmp), s(self.sTmp), 4)
            p.s_and_b32(s(self.sTmp2), s(self.sTmp2), 1)
            p.s_lshl_b32(s(self.sTmp2), s(self.sTmp2), 2)
            p.s_add_u32(s(self.sTmp), s(self.sTmp), s(self.sTmp2))
            p.v_add_u32(v(t), s(self.sTmp), v(t))
        elif mapping == "m16":
            p.v_and_b32(v(t), 3, v(rho))
            p.v_lshrrev_b32(v(f), 2, v(rho))
            p.v_lshl_add_u32(v(t), v(f), 4, v(t))
            p.s_lshl_b32(s(self.sTmp), s(self.sTmp2), 2)
            p.v_add_u32(v(t), s(self.sTmp), v(t))
        p.s_mov_b32(s(self.sTmp), rowstride)
        p.v_mad_u32_u24(v(dst), v(t), s(self.sTmp), v(pos))
        for x in (rho, pos, t, f):
            V.put(x)

    def w_read_addr16(self, dst, unit_const=None, base=0):
        p, V = self.p, self.V
        r_, f = V.get(), V.get()
        p.v_bfe_u32(v(r_), v(0), 2, 2)
        p.v_lshrrev_b32(v(f), 1, v(r_))
        p.v_and_b32(v(dst), 1, v(self.vG))
        p.v_lshl_or_b32(v(f), v(dst), 1, v(f))
        if unit_const is None:
            p.v_xor_b32(v(f), s(self.sW), v(f))
        else:
            p.v_xor_b32(v(f), unit_const, v(f))
        p.v_lshlrev_b32(v(f), 5, v(f))
        p.v_lshl_add_u32(v(r_), v(self.vG), 3, v(r_))
        p.v_lshl_add_u32(v(f), v(r_), 7, v(f))
        p.v_and_b32(v(r_), 3, v(0))
        p.v_lshl_add_u32(v(dst), v(r_), 3, v(f))
        if base:
            p.v_add_u32(v(dst), base, v(dst))
        V.put(r_)
        V.put(f)

    def phase1(self):
        p, S, V, A = self.p, self.S, self.V, self.A
        SLOT = 32 * KB
        vXd = [V.get(), V.get()]
        vWd = V.get()
        t, u = V.get(), V.get()
        for b in range(2):
            p.v_lshrrev_b32(v(t), 3, v(0))
            p.v_lshrrev_b32(v(u), 4, v(0))
            p.v_add_u32(v(u), 4 * b, v(u))
            p.v_and_b32(v(vXd[b]), 7, v(0))
            p.v_xor_b32(v(u), v(u), v(vXd[b]))
            p.v_lshlrev_b32(v(u), 4, v(u))
            p.v_add_u32(v(t), 8 * b, v(t))
            p.v_lshl_add_u32(v(vXd[b]), v(t), 10, v(u))
        self.w_dma_voff(vWd, 3072, "nat")
        sXo, sWo, sLx, sLw = S.get(), S.get(), S.get(), S.get()
        p.s_lshl_b32(s(sXo), s(self.sRG), 2)
        p.s_add_u32(s(sXo), s(sXo), s(self.sW))
        p.s_lshl_b32(s(sXo), s(sXo), 14)
        p.s_lshl_b32(s(sWo), s(self.sCB), 7)
        p.s_lshl_b32(s(sLx), s(self.sW), 11)
        p.s_lshl_b32(s(sLw), s(self.sW), 10)
        toks = [p.new_token() for _ in range(8)]

        def stage_dma(P):
            out = []
            base = (P % 5) * SLOT
            for b in range(2):
                q = p.sub()
                self.dma(q, vXd[b], self.sX, (sXo, P * 128), (sLx, base + b * 1024), toks[P])
                out.append(q.ins)
            for sp in range(2):
                for part in range(3):
                    q = p.sub()
                    self.dma(q, vWd, self.sWQKV, (sWo, (2 * P + sp) * 32 * 3072 + part * 1024),
                             (sLw, base + 8192 + (sp * 3 + part) * 4096), toks[P])
                    out.append(q.ins)
            return out

        for P in range(5):
            for x in stage_dma(P):
                p.add(x)
        vXr = [[V.get() for _ in range(3)] for _ in range(2)]
        vXo = [[V.get() for _ in range(3)] for _ in range(2)]
        vWr = [V.get() for _ in range(3)]
        for sp in range(2):
            p.v_lshrrev_b32(v(t), 1, v(self.vJ))
            p.v_add_u32(v(u), 4 * sp, v(self.vG))
            p.v_xor_b32(v(t), v(t), v(u))
            p.v_lshlrev_b32(v(t), 4, v(t))
            p.v_lshl_add_u32(v(vXr[sp][0]), v(self.vJ), 7, v(t))
            p.v_add_u32(v(vXo[sp][0]), s(sLx), v(vXr[sp][0]))
            for k in (1, 2):
                p.v_add_u32(v(vXr[sp][k]), 65536 * k, v(vXr[sp][0]))
                p.v_add_u32(v(vXo[sp][k]), 65536 * k, v(vXo[sp][0]))
        self.w_read_addr16(vWr[0])
        for k in (1, 2):
            p.v_add_u32(v(vWr[k]), 65536 * k, v(vWr[0]))
        ones = V.get(4)
        self.vOnes = ones
        for i in range(4):
            p.v_mov_b32(v(ones + i), "0x3f803f80")
        X = [[V.get(4) for _ in range(5)] for _ in range(2)]
        Wf = [[V.get(4) for _ in range(3)] for _ in range(2)]
        acc = [[V.get(4) for _ in range(4)] for _ in range(3)]
        cs = [V.get(4) for _ in range(3)]
        stS, stQ = V.get(4), V.get(4)

        def reads(st):
            P, sp = st // 2, st % 2
            base = (P % 5) * SLOT
            win, off = base // 65536, base % 65536
            q = p.sub()
            bi = st % 2
            for part in range(3):
                if part == 0:
                    q.ds_read_b128(v(X[bi][0], 4), v(vXr[sp][win]), mods=f"offset:{off}")
                for h in range(2):
                    q.ds_read_b64_tr_b16(v(Wf[bi][part] + 2 * h, 2), v(vWr[win]),
                                         mods=f"offset:{off + 8192 + (sp*3+part)*4096 + h*512}")
            for tt in range(1, 4):
                q.ds_read_b128(v(X[bi][tt], 4), v(vXr[sp][win]), mods=f"offset:{off + tt*2048}")
            q.ds_read_b128(v(X[bi][4], 4), v(vXo[sp][win]), mods=f"offset:{off}")
            return q.ins

        def mfmas(st):
            q = p.sub()
            bi = st % 2
            M = q.v_mfma_f32_16x16x32_bf16
            C = lambda rr: (v(rr, 4) if st else 0)
            for tt in range(4):
                M(v(acc[0][tt], 4), v(Wf[bi][0], 4), v(X[bi][tt], 4), C(acc[0][tt]))
                M(v(acc[1][tt], 4), v(Wf[bi][1], 4), v(X[bi][tt], 4), C(acc[1][tt]))
                M(v(acc[2][tt], 4), v(X[bi][tt], 4), v(Wf[bi][2], 4), C(acc[2][tt]))
            M(v(cs[0], 4), v(Wf[bi][0], 4), v(ones, 4), C(cs[0]))
            M(v(cs[1], 4), v(Wf[bi][1], 4), v(ones, 4), C(cs[1]))
            M(v(cs[2], 4), v(ones, 4), v(Wf[bi][2], 4), C(cs[2]))
            M(v(stS, 4), v(ones, 4), v(X[bi][4], 4), C(stS))
            M(v(stQ, 4), v(X[bi][4], 4), v(X[bi][4], 4), C(stQ))
            return q.ins

        p.wait_vm(toks[0])
        p.s_barrier()
        self.stamp("p1 first stage")
        p.add(reads(0))
        for st in range(16):
            fill = []
            if st % 2 == 1 and st < 15:
                P = (st + 1) // 2
                p.wait(lgkm=0)
                p.wait_vm(toks[P])
                p.s_barrier()
                if P + 4 < 8:
                    fill = stage_dma(P + 4)
            rd = reads(st + 1) if st < 15 else []
            p.add(interleave(mfmas(st), rd + fill))
        self.stamp("p1 loop end")
        for x in vXd + [vWd] + vXr[0] + vXr[1] + vXo[0] + vXo[1] + vWr:
            V.put(x)
        for bi in range(2):
            for x in X[bi] + Wf[bi]:
                V.put(x, 4)
        S.put(sWo), S.put(sLw)

        self.vXres = V.get(8)
        p.v_lshlrev_b32(v(t), 10, v(self.vJ))
        p.v_lshl_add_u32(v(t), v(self.vG), 5, v(t))
        p.s_lshl_b32(s(self.sTmp2), s(self.sCB), 7)
        p.s_add_u32(s(self.sTmp2), s(self.sTmp2), s(sXo))
        p.buffer_load_dwordx4(v(self.vXres, 4), v(t), s(self.sX, 4), s(self.sTmp2), mods="offen")
        p.buffer_load_dwordx4(v(self.vXres + 4, 4), v(t), s(self.sX, 4), s(self.sTmp2), mods="offen offset:16")
        S.put(sXo)

        m, var = V.get(2), V.get()
        p.v_and_b32(v(t), 3, v(0))
        p.v_cmp_eq_u32("vcc", 1, v(t))
        p.v_cndmask_b32(v(var), v(stQ), v(stQ + 1), "vcc")
        p.v_cmp_eq_u32("vcc", 2, v(t))
        p.v_cndmask_b32(v(var), v(var), v(stQ + 2), "vcc")
        p.v_cmp_eq_u32("vcc", 3, v(t))
        p.v_cndmask_b32(v(var), v(var), v(stQ + 3), "vcc")
        p.v_mul_f32(v(m + 1), f2u(1 / 512), v(stS))
        p.v_mul_f32(v(var), f2u(1 / 512), v(var))
        p.v_fma_f32(v(var), "-" + v(m + 1), v(m + 1), v(var))
        p.v_max_f32(v(var), 0, v(var))
        p.v_add_f32(v(var), f2u(EPS), v(var))
        p.v_rsq_f32(v(m), v(var))
        p.v_lshrrev_b32(v(t), 2, v(self.vJ))
        p.v_mul_f32(v(m + 1), v(m + 1), v(m))
        p.v_sub_f32(v(m + 1), 0, v(m + 1))
        p.v_cmp_eq_u32("vcc", v(t), v(self.vG))
        p.s_lshr_b32(s(self.sTmp), s(sLx), 4)
        p.s_add_u32(s(self.sTmp), s(self.sTmp), MISC)
        p.v_lshlrev_b32(v(t), 3, v(self.vJ))
        p.v_add_u32(v(t), s(self.sTmp), v(t))
        p.s_mov_b64("exec", "vcc")
        p.ds_write_b64(v(t), v(m, 2))
        p.s_mov_b64("exec", -1)
        S.put(sLx)
        V.put(m, 2), V.put(var), V.put(stS, 4), V.put(stQ, 4)
        self.get_nonce()
        p.wait(lgkm=0)
        p.s_barrier()
        stA = [V.get(2) for _ in range(4)]
        stB = [V.get(8) for _ in range(4)]
        p.v_lshlrev_b32(v(t), 3, v(self.vJ))
        p.v_add_u32(v(t), MISC, v(t))
        p.v_lshlrev_b32(v(u), 5, v(self.vG))
        p.v_add_u32(v(u), MISC, v(u))
        for tt in range(4):
            p.ds_read_b64(v(stA[tt], 2), v(t), mods=f"offset:{tt*128}")
        for tt in range(4):
            p.ds_read_b128(v(stB[tt], 4), v(u), mods=f"offset:{tt*128}")
            p.ds_read_b128(v(stB[tt] + 4, 4), v(u), mods=f"offset:{tt*128+16}")
        tmp = V.get(4)

        def affine_qk(part, tt, dst):
            for i in (0, 2):
                p.v_pk_mul_f32(v(tmp + i, 2), v(cs[part] + i, 2), v(stA[tt], 2), mods="op_sel:[0,1] op_sel_hi:[1,1]")
            for i in (0, 2):
                p.v_pk_fma_f32(v(tmp + i, 2), v(acc[part][tt] + i, 2), v(stA[tt], 2), v(tmp + i, 2),
                               mods="op_sel_hi:[1,0,1]")
            p.v_cvt_pk_bf16_f32(v(dst), v(tmp), v(tmp + 1))
            p.v_cvt_pk_bf16_f32(v(dst + 1), v(tmp + 2), v(tmp + 3))

        self.vK = [V.get(4), V.get(4)]
        self.vQ = [V.get(4), V.get(4)]
        vF = [V.get(4), V.get(4)]
        sKo = S.get()
        p.s_lshl_b32(s(sKo), s(self.sCB), 2)
        p.s_add_u32(s(sKo), s(sKo), s(self.sW))
        p.s_lshl_b32(s(sKo), s(sKo), 11)
        self.sHeadOff = S.get()
        p.s_mov_b32(s(self.sHeadOff), s(sKo))
        p.s_add_u32(s(sKo), s(sKo), s(self.sRGB))
        p.s_add_u32(s(sKo), s(sKo), K_OFF)
        tokKV = p.new_token()
        for kt in range(2):
            affine_qk(1, 2 * kt, self.vK[kt])
            affine_qk(1, 2 * kt + 1, self.vK[kt] + 2)
            p.v_permlane16_swap_b32(v(self.vK[kt]), v(self.vK[kt] + 2))
            p.v_permlane16_swap_b32(v(self.vK[kt] + 1), v(self.vK[kt] + 3))
            p.buffer_store_dwordx4(v(self.vK[kt], 4), v(self.vL16), s(self.sWS, 4), s(sKo),
                                   mods=f"offen offset:{kt*1024} sc1", token=tokKV)
        vVst = V.get()
        p.v_and_b32(v(t), 1, v(self.vG))
        p.v_lshlrev_b32(v(t), 9, v(t))
        p.v_lshrrev_b32(v(u), 1, v(self.vG))
        p.v_lshl_add_u32(v(t), v(u), 8, v(t))
        p.v_lshl_add_u32(v(vVst), v(self.vJ), 4, v(t))
        p.s_add_u32(s(sKo), s(sKo), V_OFF - K_OFF)
        for kt in range(2):
            for half in range(2):
                tt = 2 * kt + half
                for r_ in range(4):
                    p.v_mul_f32(v(tmp + r_), v(cs[2]), v(stB[tt] + 2 * r_ + 1))
                for r_ in range(4):
                    p.v_fmac_f32(v(tmp + r_), v(acc[2][tt] + r_), v(stB[tt] + 2 * r_))
                p.v_cvt_pk_bf16_f32(v(vF[kt] + 2 * half), v(tmp), v(tmp + 1))
                p.v_cvt_pk_bf16_f32(v(vF[kt] + 2 * half + 1), v(tmp + 2), v(tmp + 3))
            for i in range(2):
                p.v_permlane16_swap_b32(v(vF[kt] + i), v(vF[kt] + 2 + i))
            for i in range(2):
                p.v_permlane32_swap_b32(v(vF[kt] + i), v(vF[kt] + 2 + i))
            p.buffer_store_dwordx4(v(vF[kt], 4), v(vVst), s(self.sWS, 4), s(sKo),
                                   mods=f"offen offset:{kt*1024} sc1", token=tokKV)
        V.put(vVst)
        S.put(sKo)
        for tt in range(4):
            p.v_mul_f32(v(stA[tt]), f2u(0.25 * LOG2E), v(stA[tt]))
            p.v_mul_f32(v(stA[tt] + 1), f2u(0.25 * LOG2E), v(stA[tt] + 1))
        for qt in range(2):
            affine_qk(0, 2 * qt, self.vQ[qt])
            affine_qk(0, 2 * qt + 1, self.vQ[qt] + 2)
            p.v_permlane16_swap_b32(v(self.vQ[qt]), v(self.vQ[qt] + 2))
            p.v_permlane16_swap_b32(v(self.vQ[qt] + 1), v(self.vQ[qt] + 3))
        self.vCpat = V.get()
        p.v_and_b32(v(t), 11, v(self.vJ))
        p.v_cmp_eq_u32("vcc", 0, v(t))
        p.v_cndmask_b32(v(self.vCpat), 0, v(ones), "vcc")
        self.vV = [[vF[0], V.get(4)], [vF[1], V.get(4)]]
        for kt in range(2):
            for i in range(4):
                p.v_mov_b32(v(self.vV[kt][1] + i), v(self.vCpat))
            for i in range(4):
                p.v_permlane16_swap_b32(v(vF[kt] + i), v(self.vV[kt][1] + i))
        p.s_lshr_b32(s(self.sTmp2), s(self.sHeadOff), 4)
        p.s_add_u32(s(self.sTmp2), s(self.sTmp2), s(self.sRGB))
        p.s_add_u32(s(self.sTmp2), s(self.sTmp2), FKV_OFF)
        p.v_mov_b32(v(t), s(self.sTmp2))
        self.set_flag(t, tokKV)
        self.stamp("p1 published")
        for x in stA:
            V.put(x, 2)
        for x in stB:
            V.put(x, 8)
        V.put(tmp, 4)
        for part in range(3):
            V.put(cs[part], 4)
            for tt in range(4):
                V.put(acc[part][tt], 4)
        V.put(t), V.put(u)

    def w_image_dma(self, voff, srd, sbase, const, rowstride, ldsbase, token, sLw):
        out = []
        for st in range(16):
            q = self.p.sub()
            self.dma(q, voff, srd, (sbase, const + st * 32 * rowstride), (sLw, ldsbase + st * 4096), token)
            out.append(q.ins)
        return out

    def phase2(self):
        p, S, V, A = self.p, self.S, self.V, self.A
        M = lambda q, d, x, y, c: q.v_mfma_f32_32x32x16_bf16(d, x, y, c)
        t, u = V.get(), V.get()
        KH = [[A.get(4) for _ in range(2)] for _ in range(4)]
        VH = [[[A.get(4) for _ in range(2)] for _ in range(2)] for _ in range(4)]
        for d in range(4):
            for kt in range(2):
                for sp in range(2):
                    for i in range(4):
                        p.v_accvgpr_write_b32(r(VH[d][kt][sp] + i), v(self.vCpat))
        BD, BE = V.get(16), V.get(16)
        p.v_and_b32(v(t), 31, v(0))
        p.v_lshrrev_b32(v(u), 5, v(0))
        p.v_lshlrev_b32(v(u), 2, v(u))
        p.v_sub_u32(v(t), v(t), v(u))
        big = V.get()
        p.v_mov_b32(v(big), f2u(NEG_BIG))
        for gg in range(4):
            for r_ in range(4):
                p.v_cmp_le_i32("vcc", 8 * gg + r_, v(t))
                p.v_cndmask_b32(v(BD + 4 * gg + r_), v(big), 0, "vcc")
                p.v_cndmask_b32(v(BE + 4 * gg + r_), 0, v(big), "vcc")
        V.put(big)
        Sb = [V.get(16) for _ in range(3)]
        Pb = V.get(8)
        O = [V.get(16), V.get(16)]
        CM = [V.get(16), V.get(16)]
        CX = [V.get(16), V.get(16)]
        mx = [V.get(), V.get()]
        mold = [V.get(), V.get()]

        def pass1(units, first, exits=None):
            n = len(units)
            seen = set(first)

            def Sm(k):
                qt, K, B = units[k]
                M(p, v(Sb[k % 3], 16), r(K, 4), v(self.vQ[qt], 4), v(B, 16) if B is not None else 0)
            Sm(0)
            if n > 1:
                Sm(1)
            for k in range(n):
                if k + 2 < n:
                    Sm(k + 2)
                qt = units[k][0]
                b = Sb[k % 3]
                if qt not in seen:
                    seen.add(qt)
                    p.v_max3_f32(v(mx[qt]), v(b), v(b + 1), v(b + 2))
                    p.v_max_f32(v(mx[qt]), v(mx[qt]), v(b + 3))
                    rest = range(4, 16, 2)
                else:
                    rest = range(0, 16, 2)
                for i in rest:
                    p.v_max3_f32(v(mx[qt]), v(b + i), v(b + i + 1), v(mx[qt]))
                if exits and k in exits:
                    d, L = exits[k]
                    p.s_cmp_le_u32(s(self.sRG), d)
                    p.s_cbranch_scc1(L)

        def finish_max(qt):
            p.v_mov_b32(v(t), v(mx[qt]))
            p.v_permlane32_swap_b32(v(mx[qt]), v(t))
            p.v_max_f32(v(mx[qt]), v(mx[qt]), v(t))

        def pass2(units, fresh, exits=None):
            n = len(units)
            fresh = set(fresh)

            def Sm(k):
                qt, K, C, _ = units[k]
                M(p, v(Sb[k % 2], 16), r(K, 4), v(self.vQ[qt], 4), v(C, 16))
            Sm(0)
            for k in range(n):
                if k + 1 < n:
                    Sm(k + 1)
                qt, _, _, Vv = units[k]
                b = Sb[k % 2]
                for i in range(8):
                    p.v_exp_f32(v(b + i), v(b + i))
                for i in range(4):
                    p.v_cvt_pk_bf16_f32(v(Pb + i), v(b + 2 * i), v(b + 2 * i + 1))
                for i in range(8, 16):
                    p.v_exp_f32(v(b + i), v(b + i))
                    if i == 9:
                        M(p, v(O[qt], 16), r(Vv[0], 4), v(Pb, 4), 0 if qt in fresh else v(O[qt], 16))
                        fresh.discard(qt)
                for i in range(4, 8):
                    p.v_cvt_pk_bf16_f32(v(Pb + i), v(b + 2 * i), v(b + 2 * i + 1))
                M(p, v(O[qt], 16), r(Vv[1], 4), v(Pb + 4, 4), v(O[qt], 16))
                if exits and k in exits:
                    d, L = exits[k]
                    p.s_cmp_le_u32(s(self.sRG), d)
                    p.s_cbranch_scc1(L)

        def make_c(qt, bias):
            p.v_sub_f32(v(CM[qt]), 0, v(mx[qt]))
            for i in range(1, 16):
                p.v_mov_b32(v(CM[qt] + i), v(CM[qt]))
            for i in range(16):
                p.v_sub_f32(v(CX[qt] + i), v(bias + i), v(mx[qt]))

        pass1([(0, self.vK[0], BD), (1, self.vK[0], None), (1, self.vK[1], BD)], [])
        for qt in range(2):
            finish_max(qt)
            make_c(qt, BD)
        pass2([(0, self.vK[0], CX[0], self.vV[0]), (1, self.vK[0], CM[1], self.vV[0]),
               (1, self.vK[1], CX[1], self.vV[1])], [0, 1])
        self.stamp("p2 stage A")
        Lskip = self.lab("nohalo")
        p.s_cmp_eq_u32(s(self.sRG), 0)
        p.s_cbranch_scc1(Lskip)
        p.v_and_b32(v(t), 3, v(0))
        p.v_add_u32(v(t), 1, v(t))
        p.v_min_u32(v(t), s(self.sRG), v(t))
        p.v_sub_u32(v(t), s(self.sRG), v(t))
        p.s_mov_b32(s(self.sTmp), RGS)
        p.v_mul_lo_u32(v(t), v(t), s(self.sTmp))
        p.s_lshr_b32(s(self.sTmp2), s(self.sHeadOff), 4)
        p.s_add_u32(s(self.sTmp2), s(self.sTmp2), FKV_OFF)
        p.v_add_u32(v(t), s(self.sTmp2), v(t))
        self.poll(t, 0x100)
        p.label(Lskip)
        p.wait(vm=0)
        self.stamp("p2 kv polled")
        sB = [S.get() for _ in range(4)]
        for d in range(4):
            p.s_sub_i32(s(sB[d]), s(self.sRG), d + 1)
            p.s_max_i32(s(sB[d]), s(sB[d]), 0)
            p.s_mul_i32(s(sB[d]), s(sB[d]), RGS)
            p.s_add_u32(s(sB[d]), s(sB[d]), s(self.sHeadOff))
            p.s_add_u32(s(sB[d]), s(sB[d]), K_OFF)
        for d in range(4):
            for kt in range(2):
                p.buffer_load_dwordx4(r(KH[d][kt], 4), v(self.vL16), s(self.sWS, 4), s(sB[d]),
                                      mods=f"offen offset:{kt*1024} sc1")
        p.v_lshrrev_b32(v(u), 5, v(0))
        p.v_lshlrev_b32(v(u), 8, v(u))
        p.v_lshl_add_u32(v(u), v(self.vJ), 4, v(u))
        p.v_add_u32(v(u), V_OFF - K_OFF, v(u))
        p.s_mov_b32("exec_lo", "0x0000ffff")
        p.s_mov_b32("exec_hi", "0x0000ffff")
        for d in range(4):
            for kt in range(2):
                for sp in range(2):
                    p.buffer_load_dwordx4(r(VH[d][kt][sp], 4), v(u), s(self.sWS, 4), s(sB[d]),
                                          mods=f"offen offset:{kt*1024+sp*512} sc1")
        p.s_mov_b64("exec", -1)
        for x in sB:
            S.put(x)
        self.vWd32, self.vWd16 = V.get(), V.get()
        self.w_dma_voff(self.vWd32, 1024, "m32")
        self.w_dma_voff(self.vWd16, 1024, "m16")
        self.sCB128, self.sLw = S.get(), S.get()
        p.s_lshl_b32(s(self.sCB128), s(self.sCB), 7)
        p.s_lshl_b32(s(self.sLw), s(self.sW), 10)
        self.tokWo, self.tokW1 = p.new_token(), p.new_token()
        for x in self.w_image_dma(self.vWd32, self.sWO, self.sCB128, 0, 1024, 0, self.tokWo, self.sLw):
            p.add(x)
        for x in self.w_image_dma(self.vWd16, self.sW1, self.sCB128, 0, 1024, 64 * KB, self.tokW1, self.sLw):
            p.add(x)
        Ldone, Lp2 = self.lab("attn_done"), self.lab("attn_p2")
        p.s_cmp_eq_u32(s(self.sRG), 0)
        p.s_cbranch_scc1(Ldone)
        for qt in range(2):
            p.v_mov_b32(v(mold[qt]), v(mx[qt]))
        u1, u2, ex = [], [], {}
        for d in range(4):
            if d < 3:
                lst = [(0, 0, 0), (0, 1, 0), (1, 0, 0), (1, 1, 0)]
            else:
                lst = [(0, 0, 1), (0, 1, 0), (1, 1, 1)]
            for qt, kt, e in lst:
                u1.append((qt, KH[d][kt], BE if e else None))
                u2.append((qt, KH[d][kt], CX[qt] if e else CM[qt], VH[d][kt]))
            if d < 3:
                ex[len(u1) - 1] = d + 1
        pass1(u1, [0, 1], {k: (d, Lp2) for k, d in ex.items()})
        p.label(Lp2)
        for qt in range(2):
            finish_max(qt)
            p.v_sub_f32(v(t), v(mold[qt]), v(mx[qt]))
            p.v_exp_f32(v(t), v(t))
            make_c(qt, BE)
            for i in range(9):
                p.v_mul_f32(v(O[qt] + i), v(O[qt] + i), v(t))
        pass2(u2, [], {k: (d, Ldone) for k, d in ex.items()})
        p.label(Ldone)
        self.stamp("p2 stage B")
        p.v_and_b32(v(t), 1, v(self.vG))
        p.v_lshlrev_b32(v(t), 14, v(t))
        p.v_lshrrev_b32(v(u), 1, v(self.vG))
        p.v_lshl_add_u32(v(t), v(u), 8, v(t))
        p.v_lshl_add_u32(v(t), v(self.vJ), 4, v(t))
        p.s_lshr_b32(s(self.sTmp2), s(self.sHeadOff), 2)
        p.s_add_u32(s(self.sTmp2), s(self.sTmp2), s(self.sRGB))
        tokO = p.new_token()
        for qt in range(2):
            p.v_rcp_f32(v(u), v(O[qt] + 8))
            for i in range(8):
                p.v_mul_f32(v(O[qt] + i), v(O[qt] + i), v(u))
            for i in range(4):
                p.v_cvt_pk_bf16_f32(v(Pb + 4 * qt + i), v(O[qt] + 2 * i), v(O[qt] + 2 * i + 1))
            if qt == 1:
                p.s_add_u32(s(self.sTmp2), s(self.sTmp2), 32768)
            p.buffer_store_dwordx4(v(Pb + 4 * qt, 4), v(t), s(self.sWS, 4), s(self.sTmp2),
                                   mods=self.st_mods("offen"), token=tokO)
        self.vFlag = V.get()
        p.s_lshl_b32(s(self.sTmp), s(self.sCB), 2)
        p.s_add_u32(s(self.sTmp), s(self.sTmp), s(self.sW))
        p.s_lshl_b32(s(self.sTmp), s(self.sTmp), 2)
        p.s_add_u32(s(self.sTmp), s(self.sTmp), s(self.sRGB))
        p.s_add_u32(s(self.sTmp), s(self.sTmp), FL_OFF)
        p.v_mov_b32(v(self.vFlag), s(self.sTmp))
        self.set_flag(self.vFlag, tokO)
        self.stamp("p2 published")
        for d in range(4):
            for kt in range(2):
                A.put(KH[d][kt], 4)
                for sp in range(2):
                    A.put(VH[d][kt][sp], 4)
        for x in [BD, BE] + Sb + O + CM + CX:
            V.put(x, 16)
        V.put(Pb, 8)
        for x in mx + mold + [t, u, self.vCpat]:
            V.put(x)
        for x in self.vK + self.vQ + self.vV[0] + self.vV[1]:
            V.put(x, 4)
        S.put(self.sHeadOff)

    def next_flag(self):
        self.p.v_add_u32(v(self.vFlag), 128, v(self.vFlag))

    def colsum16(self, ldsbase, dst_lds, addr, units):
        p, V = self.p, self.V
        fr = [V.get(4) for _ in range(4)]
        c = V.get(4)
        for (areg, off, dsto) in units:
            def rd(st):
                for h in range(2):
                    p.ds_read_b64_tr_b16(v(fr[st % 4] + 2 * h, 2), v(areg), mods=f"offset:{off + st*4096 + h*512}")
            for st in range(3):
                rd(st)
            for st in range(16):
                if st + 3 < 16:
                    rd(st + 3)
                p.v_mfma_f32_16x16x32_bf16(v(c, 4), v(fr[st % 4], 4), v(self.vOnes, 4), v(c, 4) if st else 0)
            p.s_mov_b32("exec_lo", "0x00010001")
            p.s_mov_b32("exec_hi", "0x00010001")
            p.ds_write_b128(v(addr), v(c, 4), mods=f"offset:{dsto}")
            p.s_mov_b64("exec", -1)
        for x in fr + [c]:
            V.put(x, 4)

    def gemm64_pre(self, ldsbase):
        p = self.p
        self.cur_base = ldsbase
        for st in range(8):
            self.w16_read(p, st)

    def w16_read(self, q, st):
        win, off = divmod(self.cur_base, 65536)
        for nt in range(4):
            for h in range(2):
                q.ds_read_b64_tr_b16(r(self.WB[st % 8][nt] + 2 * h, 2), v(self.vWa[win][nt]),
                                     mods=f"offset:{off + st*4096 + h*512}")

    def gemm64_main(self, act, acc):
        p = self.p
        for st in range(16):
            for nt in range(4):
                p.v_mfma_f32_16x16x32_bf16(v(acc + 4 * nt, 4), r(self.WB[st % 8][nt], 4), r(act + 4 * st, 4),
                                           v(acc + 4 * nt, 4) if st else 0)
            if st < 8:
                self.w16_read(p, st + 8)

    def act_loads(self, act, off, voffs):
        p, S = self.p, self.S
        p.s_lshl_b32(s(self.sTmp2), s(self.sW), 14)
        p.s_add_u32(s(self.sTmp2), s(self.sTmp2), s(self.sRGB))
        p.s_add_u32(s(self.sTmp2), s(self.sTmp2), off)
        for st in range(16):
            if st and st % 4 == 0:
                p.s_add_u32(s(self.sTmp2), s(self.sTmp2), 4096)
            p.buffer_load_dwordx4(r(act + 4 * st, 4), v(voffs(st)), s(self.sWS, 4), s(self.sTmp2),
                                  mods=f"offen offset:{(st%4)*1024} sc1")

    def stats_partial(self, val, off, token):
        p, V = self.p, self.V
        sm, sq = V.get(2), V.get(2)
        p.v_pk_add_f32(v(sm, 2), v(val, 2), v(val + 2, 2))
        p.v_pk_mul_f32(v(sq, 2), v(val, 2), v(val, 2))
        p.v_pk_fma_f32(v(sq, 2), v(val + 2, 2), v(val + 2, 2), v(sq, 2))
        for i in range(4, 16, 2):
            p.v_pk_add_f32(v(sm, 2), v(sm, 2), v(val + i, 2))
            p.v_pk_fma_f32(v(sq, 2), v(val + i, 2), v(val + i, 2), v(sq, 2))
        p.v_add_f32(v(sm), v(sm), v(sm + 1))
        p.v_add_f32(v(sq), v(sq), v(sq + 1))
        p.v_permlane32_swap_b32(v(sm), v(sq))
        p.v_add_f32(v(sm), v(sm), v(sq))
        p.v_mov_b32(v(sq), v(sm))
        p.v_permlane16_swap_b32(v(sm), v(sq))
        p.v_add_f32(v(sm), v(sm), v(sq))
        p.v_lshrrev_b32(v(sq), 5, v(0))
        p.v_lshlrev_b32(v(sq), 2, v(sq))
        p.v_lshl_add_u32(v(sq), v(self.vJ), 3, v(sq))
        p.s_lshl_b32(s(self.sTmp), s(self.sW), 10)
        p.s_add_u32(s(self.sTmp), s(self.sTmp), s(self.sCB128))
        p.s_add_u32(s(self.sTmp), s(self.sTmp), s(self.sRGB))
        p.s_add_u32(s(self.sTmp), s(self.sTmp), off)
        p.buffer_store_dword(v(sm), v(sq), s(self.sWS, 4), s(self.sTmp), mods=self.st_mods("offen"), token=token)
        V.put(sm, 2), V.put(sq, 2)

    def store_tile(self, pk, off, voff, token, mods=None):
        p = self.p
        p.s_lshl_b32(s(self.sTmp), s(self.sCB), 11)
        p.s_add_u32(s(self.sTmp), s(self.sTmp), s(self.sRGB))
        p.s_add_u32(s(self.sTmp), s(self.sTmp), off)
        for k in range(2):
            p.buffer_store_dwordx4(v(pk + 4 * k, 4), v(voff), s(self.sWS, 4), s(self.sTmp),
                                   mods=(mods or self.st_mods)(f"offen offset:{k*1024}"), token=token)

    def gelu(self, q, x, n, cA, cB, cI, dst, tmp):
        out = []
        for i in range(0, n, 2):
            t0 = tmp + (i % 4)
            g = q.sub()
            g.v_pk_mul_f32(v(t0, 2), v(x + i, 2), v(x + i, 2))
            g.v_pk_fma_f32(v(t0, 2), v(t0, 2), v(cB, 2), v(cA, 2), mods="op_sel_hi:[1,0,0]")
            g.v_pk_mul_f32(v(t0, 2), v(t0, 2), v(x + i, 2))
            g.v_exp_f32(v(t0), v(t0))
            g.v_exp_f32(v(t0 + 1), v(t0 + 1))
            g.v_pk_fma_f32(v(t0, 2), v(t0, 2), v(cI, 2), v(cI, 2), mods="op_sel_hi:[1,0,0]")
            g.v_rcp_f32(v(t0), v(t0))
            g.v_rcp_f32(v(t0 + 1), v(t0 + 1))
            g.v_pk_mul_f32(v(t0, 2), v(t0, 2), v(x + i, 2))
            g.v_cvt_pk_bf16_f32(v(dst + i // 2), v(t0), v(t0 + 1))
            out.append(g.ins)
        res = []
        for k in range(0, len(out), 2):
            if k + 1 < len(out):
                for x0, x1 in zip(out[k], out[k + 1]):
                    res += [x0, x1]
            else:
                res += out[k]
        return res

    def gelu_consts(self, sc, cA, cB, cI):
        p = self.p
        k1 = 2 * math.sqrt(2 / math.pi)
        p.v_mul_f32(v(cA), f2u(-k1 * LOG2E), v(sc))
        p.v_mul_f32(v(cB), v(sc), v(sc))
        p.v_mul_f32(v(cB), v(cB), v(sc))
        p.v_mul_f32(v(cB), f2u(-k1 * 0.044715 * LOG2E), v(cB))
        p.v_rcp_f32(v(cI), v(sc))

    def phase345(self):
        p, S, V, A = self.p, self.S, self.V, self.A
        t, u = V.get(), V.get()
        self.WB = [[A.get(4) for _ in range(4)] for _ in range(8)]
        self.vWa = [[V.get() for _ in range(4)] for _ in range(2)]
        for nt in range(4):
            self.w_read_addr16(self.vWa[0][nt], nt)
            p.v_add_u32(v(self.vWa[1][nt]), 65536, v(self.vWa[0][nt]))
        act = A.get(64)
        acc = V.get(16)
        pk = V.get(8)
        vPoll = V.get()
        vTileSt = V.get()
        p.s_lshl_b32(s(self.sTmp), s(self.sW), 14)
        p.v_add_u32(v(vTileSt), s(self.sTmp), v(self.vL16))
        self.transpose4(self.vXres)
        p.wait_vm(self.tokW1)
        p.s_barrier()
        self.gemm64_pre(0)
        self.w_read_addr16(t, None, 64 * KB)
        p.s_lshl_b32(s(self.sTmp), s(self.sW), 6)
        p.s_add_u32(s(self.sTmp), s(self.sTmp), MISC + 1024)
        p.v_lshlrev_b32(v(u), 4, v(self.vG))
        p.v_add_u32(v(u), s(self.sTmp), v(u))
        self.colsum16(64 * KB, None, u, [(t, 0, 0)])
        p.v_and_b32(v(vPoll), 31, v(0))
        p.v_lshlrev_b32(v(vPoll), 2, v(vPoll))
        p.s_add_u32(s(self.sTmp), s(self.sRGB), FL_OFF + PH_O * 128)
        p.v_add_u32(v(vPoll), s(self.sTmp), v(vPoll))
        self.stamp("p3 window done")
        self.poll(vPoll, 0x200)
        self.stamp("p3 polled")
        self.act_loads(act, O_OFF, lambda st: self.vL16)
        self.gemm64_main(act, acc)
        self.stamp("p3 gemm")
        self.vH = V.get(16)
        H = self.vH
        for nt in range(4):
            for i in range(2):
                p.v_lshlrev_b32(v(H + 4 * nt + 2 * i), 16, v(self.vXres + 2 * nt + i))
                p.v_and_b32(v(H + 4 * nt + 2 * i + 1), "0xffff0000", v(self.vXres + 2 * nt + i))
        V.put(self.vXres, 8)
        for i in range(0, 16, 2):
            p.v_pk_add_f32(v(H + i, 2), v(H + i, 2), v(acc + i, 2))
        for i in range(8):
            p.v_cvt_pk_bf16_f32(v(pk + i), v(H + 2 * i), v(H + 2 * i + 1))
        tok = p.new_token()
        self.store_tile(pk, H_OFF, vTileSt, tok)
        self.stats_partial(H, STH_OFF, tok)
        self.next_flag()
        self.set_flag(self.vFlag, tok)
        self.stamp("p3 published")
        p.wait(lgkm=0)
        p.s_barrier()
        tokW2 = p.new_token()
        self.gemm64_pre(64 * KB)
        cs = V.get(16)
        p.v_lshlrev_b32(v(u), 4, v(self.vG))
        p.v_add_u32(v(u), MISC + 1024, v(u))
        for nt in range(4):
            p.ds_read_b128(v(cs + 4 * nt, 4), v(u), mods=f"offset:{nt*64}")
        p.v_and_b32(v(t), 7, v(0))
        p.v_lshlrev_b32(v(t), 4, v(t))
        p.s_lshl_b32(s(self.sTmp), s(self.sW), 2)
        p.s_add_u32(s(self.sTmp), s(self.sTmp), s(self.sRGB))
        p.s_add_u32(s(self.sTmp), s(self.sTmp), FL_OFF + PH_H * 128)
        p.v_add_u32(v(t), s(self.sTmp), v(t))
        self.stamp("p4 window done")
        self.poll(t, 0x300)
        self.stamp("p4 polled")
        stt = V.get(4)
        p.v_lshlrev_b32(v(u), 8, v(self.vG))
        p.v_lshl_add_u32(v(u), v(self.vJ), 3, v(u))
        p.s_lshl_b32(s(self.sTmp), s(self.sW), 10)
        p.s_add_u32(s(self.sTmp), s(self.sTmp), s(self.sRGB))
        p.s_add_u32(s(self.sTmp), s(self.sTmp), STH_OFF)
        p.buffer_load_dwordx2(v(stt, 2), v(u), s(self.sWS, 4), s(self.sTmp), mods="offen sc1")
        p.buffer_load_dwordx2(v(stt + 2, 2), v(u), s(self.sWS, 4), s(self.sTmp), mods="offen offset:128 sc1")
        self.act_loads(act, H_OFF, lambda st: self.vL16)
        for x in self.w_image_dma(self.vWd16, self.sW2, self.sCB128, 0, 1024, 0, tokW2, self.sLw):
            p.add(x)
        mean, rstd = V.get(2), V.get(2)
        cA, cB, cI = V.get(2), V.get(2), V.get(2)
        p.v_pk_add_f32(v(stt, 2), v(stt, 2), v(stt + 2, 2))
        p.v_permlane32_swap_b32(v(stt), v(stt + 1))
        p.v_add_f32(v(stt), v(stt), v(stt + 1))
        p.v_mov_b32(v(stt + 1), v(stt))
        p.v_permlane16_swap_b32(v(stt), v(stt + 1))
        p.v_add_f32(v(stt), v(stt), v(stt + 1))
        p.v_mov_b32(v(stt + 1), v(stt))
        p.v_permlane32_swap_b32(v(stt), v(stt + 1))
        p.v_mul_f32(v(mean), f2u(1 / 512), v(stt))
        p.v_mul_f32(v(t), f2u(1 / 512), v(stt + 1))
        p.v_fma_f32(v(t), "-" + v(mean), v(mean), v(t))
        p.v_max_f32(v(t), 0, v(t))
        p.v_add_f32(v(u), f2u(EPS), v(t))
        p.v_rsq_f32(v(rstd), v(u))
        p.v_mul_f32(v(t), v(t), v(rstd))
        p.v_mov_b32(v(u), f2u(EPS))
        p.v_fmac_f32(v(u), v(t), v(rstd))
        p.v_rsq_f32(v(u), v(u))
        p.v_sub_f32(v(mean), 0, v(mean))
        p.v_mul_f32(v(u), v(u), v(rstd))
        self.gelu_consts(u, cA, cB, cI)
        V.put(stt, 4)
        self.gemm64_main(act, acc)
        self.stamp("p4 gemm")
        for i in range(0, 16, 2):
            p.v_pk_fma_f32(v(acc + i, 2), v(cs + i, 2), v(mean, 2), v(acc + i, 2), mods="op_sel_hi:[1,0,1]")
        V.put(cs, 16)
        tmp = V.get(4)
        p.add(self.gelu(p, acc, 16, cA, cB, cI, pk, tmp))
        V.put(tmp, 4)
        for x in (cA, cB, cI):
            V.put(x, 2)
        sSh = S.get()
        p.s_lshr_b32(s(self.sTmp), s(self.sCB), 2)
        p.s_add_u32(s(sSh), s(self.sTmp), 1)
        p.s_sub_i32(s(self.sTmp), 0, s(sSh))
        p.s_bitcmp1_b32(s(self.sCB), 1)
        p.s_cselect_b32(s(sSh), s(self.sTmp), s(sSh))
        vm, vh = V.get(), V.get()
        p.s_lshl_b32(s(self.sTmp), s(self.sW), 4)
        p.s_add_i32(s(self.sTmp), s(self.sTmp), s(sSh))
        p.v_add_u32(v(t), s(self.sTmp), v(self.vJ))
        p.v_lshrrev_b32(v(u), 4, v(t))
        p.v_lshlrev_b32(v(u), 14, v(u))
        p.v_and_b32(v(vm), 15, v(t))
        p.v_lshl_add_u32(v(vm), v(vm), 4, v(u))
        p.v_lshl_add_u32(v(vm), v(self.vG), 8, v(vm))
        p.v_mov_b32(v(u), hex(OOB))
        p.v_cmp_gt_u32("vcc", 64, v(t))
        p.v_cndmask_b32(v(vm), v(u), v(vm), "vcc")
        p.s_cmp_gt_i32(s(sSh), 0)
        p.s_cselect_b32(s(self.sTmp), 1, -1)
        p.s_add_i32(s(self.sTmp), s(self.sTmp), s(self.sRG))
        p.s_mul_i32(s(self.sTmp2), s(self.sTmp), RGS)
        p.s_add_u32(s(self.sTmp2), s(self.sTmp2), TH_OFF)
        p.s_cmp_lt_u32(s(self.sTmp), 32)
        p.s_cselect_b32(s(self.sTmp2), s(self.sTmp2), hex(OOB))
        p.v_and_b32(v(vh), 1, v(t))
        p.v_lshlrev_b32(v(vh), 4, v(vh))
        p.v_lshl_add_u32(v(vh), v(self.vG), 5, v(vh))
        p.v_add_u32(v(vh), s(self.sTmp2), v(vh))
        p.v_cndmask_b32(v(vh), v(vh), v(u), "vcc")
        tok = p.new_token()
        tokH = p.new_token()
        self.store_tile(pk, T_OFF, vm, tok)
        p.s_lshl_b32(s(self.sTmp), s(self.sCB), 11)
        for k in range(2):
            p.buffer_store_dwordx4(v(pk + 4 * k, 4), v(vh), s(self.sWS, 4), s(self.sTmp),
                                   mods=f"offen offset:{k*1024} sc1", token=tokH)
        self.next_flag()
        self.set_flag(self.vFlag, tok)
        p.s_cmp_gt_i32(s(sSh), 0)
        p.s_cselect_b32(s(self.sTmp), 3, 0)
        p.s_add_u32(s(self.sTmp2), s(self.sRGB), s(self.sCB128))
        p.s_add_u32(s(self.sTmp2), s(self.sTmp2), FHALO_OFF)
        p.s_cmp_eq_u32(s(self.sTmp), s(self.sW))
        p.s_cselect_b32(s(self.sTmp2), s(self.sTmp2), hex(OOB))
        p.v_mov_b32(v(t), s(self.sTmp2))
        self.set_flag(t, tokH)
        S.put(sSh)
        V.put(vm), V.put(vh)
        self.stamp("p4 published")
        p.wait_vm(tokW2)
        p.wait(lgkm=0)
        p.s_barrier()
        self.gemm64_pre(0)
        Y = V.get(16)
        for i in range(0, 16, 2):
            p.v_pk_add_f32(v(Y + i, 2), v(H + i, 2), v(mean, 2), mods="op_sel_hi:[1,0]")
        for i in range(0, 16, 2):
            p.v_pk_mul_f32(v(Y + i, 2), v(Y + i, 2), v(rstd, 2), mods="op_sel_hi:[1,0]")
        V.put(mean, 2), V.put(rstd, 2)
        vo = [V.get() for _ in range(4)]
        for gam in range(4):
            mag = 1 + gam // 2
            up = gam % 2 == 0
            p.v_lshlrev_b32(v(u), 5, v(self.vG))
            p.v_and_b32(v(t), 1, v(self.vJ))
            p.v_lshl_add_u32(v(u), v(t), 4, v(u))
            p.s_mov_b32(s(self.sTmp), TH_OFF - T_OFF - (0 if up else 3 * 16384))
            p.s_cmp_eq_u32(s(self.sRG), 0 if up else 31)
            p.s_cselect_b32(s(self.sTmp), hex(OOB), s(self.sTmp))
            p.v_add_u32(v(u), s(self.sTmp), v(u))
            p.s_cmp_eq_u32(s(self.sW), 0 if up else 3)
            if up:
                p.s_cselect_b32(s(self.sTmp), mag, 0)
                p.v_cmp_gt_u32("vcc", s(self.sTmp), v(self.vJ))
            else:
                p.s_cselect_b32(s(self.sTmp), 16 - mag, 16)
                p.v_cmp_le_u32("vcc", s(self.sTmp), v(self.vJ))
            p.v_cndmask_b32(v(vo[gam]), v(self.vL16), v(u), "vcc")
        p.v_add_u32(v(vPoll), 2 * 128, v(vPoll))
        p.v_and_b32(v(t), 7, v(0))
        p.v_and_b32(v(u), 2, v(t))
        p.v_add_u32(v(u), -1, v(u))
        p.v_add_u32(v(u), s(self.sRG), v(u))
        p.v_cmp_gt_u32("vcc", 32, v(u))
        p.s_mov_b32(s(self.sTmp), RGS)
        p.v_mul_lo_u32(v(u), v(u), s(self.sTmp))
        p.v_lshl_add_u32(v(u), v(t), 7, v(u))
        p.v_add_u32(v(u), FHALO_OFF, v(u))
        p.v_cndmask_b32(v(u), v(vPoll), v(u), "vcc")
        p.v_cmp_gt_u32("vcc", 32, v(0))
        p.v_cndmask_b32(v(u), v(u), v(vPoll), "vcc")
        self.stamp("p5 window done")
        self.poll(u, 0x400)
        self.stamp("p5 polled")
        self.act_loads(act, T_OFF, lambda st: vo[st // 4])
        self.vWd3 = V.get()
        self.w_dma_voff(self.vWd3, 3584, "m16", swz32=True)
        self.sW3o = S.get()
        p.s_min_u32(s(self.sW3o), s(self.sNB), 13)
        p.s_lshl_b32(s(self.sW3o), s(self.sW3o), 8)
        self.tokW3 = p.new_token()
        for x in self.w_image_dma(self.vWd3, self.sW3, self.sW3o, 0, 3584, 64 * KB, self.tokW3, self.sLw):
            p.add(x)
        self.gemm64_main(act, acc)
        self.stamp("p5 gemm")
        for x in vo:
            V.put(x)
        for i in range(0, 16, 2):
            p.v_pk_add_f32(v(Y + i, 2), v(Y + i, 2), v(acc + i, 2))
        for i in range(8):
            p.v_cvt_pk_bf16_f32(v(pk + i), v(Y + 2 * i), v(Y + 2 * i + 1))
        tok = p.new_token()
        self.store_tile(pk, X1_OFF, vTileSt, tok)
        self.stats_partial(Y, STX_OFF, tok)
        for i in range(0, 16, 2):
            p.v_pk_add_f32(v(H + i, 2), v(H + i, 2), v(Y + i, 2))
        self.next_flag()
        self.set_flag(self.vFlag, tok)
        self.stamp("p5 published")
        V.put(Y, 16), V.put(acc, 16), V.put(pk, 8), V.put(vPoll), V.put(vTileSt), V.put(t), V.put(u)
        A.put(act, 64)
        for x in self.WB:
            for y in x:
                A.put(y, 4)
        for x in self.vWa[1]:
            V.put(x)
        V.put(self.vWd32), V.put(self.vWd16)

    def phase6(self):
        p, S, V, A = self.p, self.S, self.V, self.A
        t, u = V.get(), V.get()
        p.wait(lgkm=0)
        p.s_barrier()
        for x in self.w_image_dma(self.vWd3, self.sW3, self.sW3o, 128, 3584, 0, self.tokW3, self.sLw):
            p.add(x)
        V.put(self.vWd3)
        S.put(self.sW3o)
        p.wait_vm(self.tokW3)
        p.s_barrier()
        ca, cb_ = V.get(), V.get()
        p.v_bfe_u32(v(t), v(0), 2, 2)
        p.v_and_b32(v(u), 2, v(t))
        p.v_xor_b32(v(u), s(self.sW), v(u))
        p.v_lshlrev_b32(v(u), 5, v(u))
        p.v_lshl_add_u32(v(t), v(self.vG), 3, v(t))
        p.v_lshl_add_u32(v(u), v(t), 7, v(u))
        p.v_and_b32(v(t), 3, v(0))
        p.v_lshl_add_u32(v(cb_), v(t), 3, v(u))
        p.v_add_u32(v(ca), 65536, v(cb_))
        p.s_lshl_b32(s(self.sTmp), s(self.sW), 6)
        p.s_add_u32(s(self.sTmp), s(self.sTmp), MISC + 2048)
        p.v_lshlrev_b32(v(u), 4, v(self.vG))
        p.v_add_u32(v(u), s(self.sTmp), v(u))
        self.colsum16(None, None, u, [(ca, 0, 0), (cb_, 0, 256)])
        V.put(ca), V.put(cb_)
        p.wait(lgkm=0)
        p.s_barrier()
        Lidle = self.lab("p6idle")
        p.s_cmp_ge_u32(s(self.sNB), 14)
        p.s_cbranch_scc1(Lidle)
        wa = [[V.get(), V.get()], [V.get(), V.get()]]
        for m in range(2):
            p.v_bfe_u32(v(t), v(0), 2, 2)
            p.v_and_b32(v(u), 1, v(self.vG))
            p.v_or_b32(v(u), 2 * m, v(u))
            p.v_and_b32(v(wa[1][m]), 2, v(t))
            p.v_xor_b32(v(u), v(u), v(wa[1][m]))
            p.v_lshlrev_b32(v(u), 5, v(u))
            p.v_lshl_add_u32(v(u), v(t), 7, v(u))
            p.v_lshrrev_b32(v(t), 5, v(0))
            p.v_lshl_add_u32(v(u), v(t), 10, v(u))
            p.v_and_b32(v(t), 3, v(0))
            p.v_lshl_add_u32(v(wa[1][m]), v(t), 3, v(u))
            p.v_add_u32(v(wa[0][m]), 65536, v(wa[1][m]))
        sSrc = S.get()
        p.s_and_b32(s(sSrc), s(self.sRG), -2)
        p.s_lshr_b32(s(self.sTmp), s(self.sW), 1)
        p.s_add_u32(s(sSrc), s(sSrc), s(self.sTmp))
        p.s_mul_i32(s(sSrc), s(sSrc), RGS)
        sT2 = S.get()
        p.s_and_b32(s(sT2), s(self.sW), 1)
        p.s_lshl_b32(s(sT2), s(sT2), 1)
        p.v_and_b32(v(t), 7, v(0))
        p.v_lshlrev_b32(v(t), 2, v(t))
        p.v_bfe_u32(v(u), v(0), 3, 1)
        p.v_add_u32(v(t), v(t), v(u))
        p.v_add_u32(v(t), s(sT2), v(t))
        p.v_lshlrev_b32(v(t), 2, v(t))
        p.s_add_u32(s(self.sTmp), s(sSrc), FL_OFF + PH_X1 * 128)
        p.v_add_u32(v(t), s(self.sTmp), v(t))
        NB = 8
        Wr = [V.get(4) for _ in range(NB)]
        seq = [(i, ks) for ks in range(32) for i in range(2)] + [(2, ks) for ks in range(32)] + \
              [(3, ks) for ks in range(32)]

        def wread(q, n):
            i, ks = seq[n]
            for h in range(2):
                q.ds_read_b64_tr_b16(v(Wr[n % NB] + 2 * h, 2), v(wa[i // 2][i % 2]),
                                     mods=f"offset:{(ks//2)*4096 + (ks%2)*2048 + h*512}")
        for n in range(NB - 1):
            wread(p, n)
        self.stamp("p6 window done")
        self.poll(t, 0x500)
        self.stamp("p6 polled")
        stt = V.get(8)
        vt = V.get()
        p.v_and_b32(v(t), 1, v(self.vG))
        p.v_add_u32(v(t), s(sT2), v(t))
        p.v_lshrrev_b32(v(u), 5, v(0))
        p.v_lshlrev_b32(v(vt), 10, v(t))
        p.v_lshl_add_u32(v(vt), v(u), 9, v(vt))
        p.v_lshl_add_u32(v(vt), v(self.vJ), 3, v(vt))
        p.s_add_u32(s(self.sTmp), s(sSrc), STX_OFF)
        for k in range(4):
            p.buffer_load_dwordx2(v(stt + 2 * k, 2), v(vt), s(self.sWS, 4), s(self.sTmp), mods=f"offen offset:{k*128} sc1")
        X1 = A.get(128)
        p.v_lshlrev_b32(v(vt), 14, v(t))
        p.v_lshl_add_u32(v(vt), v(u), 8, v(vt))
        p.v_lshl_add_u32(v(vt), v(self.vJ), 4, v(vt))
        p.s_add_u32(s(self.sTmp2), s(sSrc), X1_OFF)
        for ks in range(32):
            if ks and ks % 8 == 0:
                p.s_add_u32(s(self.sTmp2), s(self.sTmp2), 4096)
            p.buffer_load_dwordx4(r(X1 + 4 * ks, 4), v(vt), s(self.sWS, 4), s(self.sTmp2),
                                  mods=f"offen offset:{(ks%8)*512} sc1")
        vst = V.get()
        p.s_mov_b32(s(self.sTmp), 56 * KB)
        p.v_mul_lo_u32(v(vst), v(t), s(self.sTmp))
        p.v_lshl_add_u32(v(vst), v(u), 8, v(vst))
        p.v_lshl_add_u32(v(vst), v(self.vJ), 4, v(vst))
        sU = S.get()
        p.s_lshl_b32(s(sU), s(self.sNB), 12)
        p.s_add_u32(s(sU), s(sU), s(sSrc))
        p.s_add_u32(s(sU), s(sU), U_OFF)
        mean = V.get(2)
        cA, cB, cI = V.get(2), V.get(2), V.get(2)
        p.v_pk_add_f32(v(stt, 2), v(stt, 2), v(stt + 2, 2))
        p.v_pk_add_f32(v(stt + 4, 2), v(stt + 4, 2), v(stt + 6, 2))
        p.v_pk_add_f32(v(stt, 2), v(stt, 2), v(stt + 4, 2))
        p.v_mov_b32(v(stt + 2), v(stt))
        p.v_mov_b32(v(stt + 3), v(stt + 1))
        p.v_permlane32_swap_b32(v(stt), v(stt + 2))
        p.v_permlane32_swap_b32(v(stt + 1), v(stt + 3))
        p.v_pk_add_f32(v(stt, 2), v(stt, 2), v(stt + 2, 2))
        p.v_mul_f32(v(mean), f2u(1 / 512), v(stt))
        p.v_mul_f32(v(t), f2u(1 / 512), v(stt + 1))
        p.v_fma_f32(v(t), "-" + v(mean), v(mean), v(t))
        p.v_max_f32(v(t), 0, v(t))
        p.v_add_f32(v(t), f2u(EPS), v(t))
        p.v_rsq_f32(v(t), v(t))
        p.v_sub_f32(v(mean), 0, v(mean))
        self.gelu_consts(t, cA, cB, cI)
        V.put(stt, 8)
        acc = [V.get(16) for _ in range(4)]
        cs = V.get(16)
        pk = V.get(8)
        tmp = V.get(4)
        vcs = V.get()
        p.v_lshlrev_b32(v(vcs), 4, v(u))
        p.v_add_u32(v(vcs), MISC + 2048, v(vcs))
        tokU = p.new_token()

        def epi(i):
            q = p.sub()
            for gg in range(4):
                q.ds_read_b128(v(cs + 4 * gg, 4), v(vcs), mods=f"offset:{i*128 + gg*32}")
            for k in range(0, 16, 2):
                q.v_pk_fma_f32(v(acc[i] + k, 2), v(cs + k, 2), v(mean, 2), v(acc[i] + k, 2), mods="op_sel_hi:[1,0,1]")
            q.add(self.gelu(q, acc[i], 16, cA, cB, cI, pk, tmp))
            for k in range(2):
                q.buffer_store_dwordx4(v(pk + 4 * k, 4), v(vst), s(self.sWS, 4), s(sU),
                                       mods=self.st_mods(f"offen offset:{i*1024 + k*512}"), token=tokU)
            return q.ins

        def mm(lo, hi):
            out = []
            for n in range(lo, hi):
                q = p.sub()
                i, ks = seq[n]
                if n + NB - 1 < len(seq):
                    wread(q, n + NB - 1)
                q.v_mfma_f32_32x32x16_bf16(v(acc[i], 16), v(Wr[n % NB], 4), r(X1 + 4 * ks, 4),
                                           v(acc[i], 16) if ks else 0)
                out.append(q.ins)
            return out
        for x in mm(0, 64):
            p.add(x)
        self.stamp("p6 pass1")
        p.add(interleave(mm(64, 96), epi(0), start=1))
        p.add(interleave(mm(96, 128), epi(1), start=1))
        self.stamp("p6 gemm")
        p.add(epi(2))
        p.add(epi(3))
        p.wait(vm=0, lgkm=0)
        p.label(Lidle)
        self.next_flag()
        self.set_flag(self.vFlag)
        self.stamp("p6 published")
        for x in wa[0] + wa[1] + [t, u, vt, vst, vcs]:
            V.put(x)
        for x in Wr + [tmp]:
            V.put(x, 4)
        for x in acc + [cs]:
            V.put(x, 16)
        V.put(pk, 8)
        for x in (mean, cA, cB, cI):
            V.put(x, 2)
        A.put(X1, 128)
        S.put(sSrc), S.put(sT2), S.put(sU)

    def phase7(self):
        p, S, V, A = self.p, self.S, self.V, self.A
        t, u = V.get(), V.get()
        p.s_barrier()
        W4 = [[A.get(4) for _ in range(4)] for _ in range(14)]
        vd = [V.get(), V.get()]
        for qp in range(2):
            self.w_dma_voff(vd[qp], 1024, "m32", qconst=qp)
        sSrc, sL = S.get(), S.get()
        p.s_mul_i32(s(sSrc), s(self.sW), 14 * 32 * 1024)
        p.s_add_u32(s(sSrc), s(sSrc), s(self.sCB128))
        p.s_mul_i32(s(sL), s(self.sW), 28 * KB)
        wa = [V.get() for _ in range(4)]
        for nt in range(4):
            p.v_add_u32(v(wa[nt]), s(sL), v(self.vWa[0][nt]))
        for rnd in range(2):
            tk = [p.new_token() for _ in range(7)]
            if rnd:
                p.wait(lgkm=0)
            for k in range(7):
                for q in range(4):
                    self.dma(p, vd[q % 2], self.sW4, (sSrc, ((rnd * 7 + k) * 32 + 16 * (q // 2)) * 1024),
                             (sL, k * 4096 + q * 1024), tk[k])
            for k in range(7):
                p.wait_vm(tk[k])
                for nt in range(4):
                    for h in range(2):
                        p.ds_read_b64_tr_b16(r(W4[rnd * 7 + k][nt] + 2 * h, 2), v(wa[nt]),
                                             mods=f"offset:{k*4096 + h*512}")
        for x in vd + wa + self.vWa[0]:
            V.put(x)
        p.v_and_b32(v(t), 15, v(0))
        p.v_min_u32(v(t), 13, v(t))
        p.v_lshrrev_b32(v(u), 3, v(t))
        p.s_mov_b32(s(self.sTmp), RGS)
        p.v_mul_lo_u32(v(u), v(u), s(self.sTmp))
        p.v_and_b32(v(t), 7, v(t))
        p.v_lshl_add_u32(v(u), v(t), 4, v(u))
        p.v_and_b32(v(t), 1, v(self.vG))
        p.v_lshl_add_u32(v(u), v(t), 2, v(u))
        p.s_and_b32(s(self.sTmp), s(self.sRG), 1)
        p.s_mul_i32(s(self.sTmp2), s(self.sTmp), RGS)
        p.s_sub_u32(s(self.sTmp2), s(self.sRGB), s(self.sTmp2))
        p.s_lshl_b32(s(self.sTmp), s(self.sTmp), 3)
        p.s_add_u32(s(self.sTmp2), s(self.sTmp2), s(self.sTmp))
        p.s_add_u32(s(self.sTmp2), s(self.sTmp2), FL_OFF + PH_U * 128)
        p.v_add_u32(v(u), s(self.sTmp2), v(u))
        self.stamp("p7 window done")
        self.poll(u, 0x600)
        self.stamp("p7 polled")
        NB = 8
        U = [[V.get(4) for _ in range(4)] for _ in range(NB)]
        acc = [V.get(16) for _ in range(4)]
        sU = [S.get() for _ in range(4)]
        p.s_mul_i32(s(sU[0]), s(self.sW), 14 * KB)
        p.s_add_u32(s(sU[0]), s(sU[0]), s(self.sRGB))
        p.s_add_u32(s(sU[0]), s(sU[0]), U_OFF)
        for tt in range(1, 4):
            p.s_add_u32(s(sU[tt]), s(sU[0]), tt * 56 * KB)

        def uload(ks):
            if ks and ks % 4 == 0:
                for tt in range(4):
                    p.s_add_u32(s(sU[tt]), s(sU[tt]), 4096)
            for tt in range(4):
                p.buffer_load_dwordx4(v(U[ks % NB][tt], 4), v(self.vL16), s(self.sWS, 4), s(sU[tt]),
                                      mods=f"offen offset:{(ks%4)*1024} sc1")
        for ks in range(NB):
            uload(ks)
        for ks in range(14):
            for tt in range(4):
                for nt in range(4):
                    p.v_mfma_f32_16x16x32_bf16(v(acc[tt] + 4 * nt, 4), r(W4[ks][nt], 4), v(U[ks % NB][tt], 4),
                                               v(acc[tt] + 4 * nt, 4) if ks else 0)
            if ks + NB < 14:
                uload(ks + NB)
        self.stamp("p7 gemm")
        p.s_barrier()
        p.s_lshl_b32(s(self.sTmp), s(self.sW), 12)
        p.v_add_u32(v(t), s(self.sTmp), v(self.vL16))
        for tt in range(4):
            for nt in range(4):
                p.ds_write_b128(v(t), v(acc[tt] + 4 * nt, 4), mods=f"offset:{tt*16384 + nt*1024}")
        p.s_lshl_b32(s(self.sTmp), s(self.sW), 14)
        p.v_add_u32(v(t), s(self.sTmp), v(self.vL16))
        p.wait(lgkm=0)
        p.s_barrier()
        for sw in range(4):
            for nt in range(4):
                p.ds_read_b128(v(acc[sw] + 4 * nt, 4), v(t), mods=f"offset:{sw*4096 + nt*1024}")
        H = self.vH
        for sw in range(4):
            for i in range(0, 16, 2):
                p.v_pk_add_f32(v(H + i, 2), v(H + i, 2), v(acc[sw] + i, 2))
        pk = V.get(8)
        for i in range(8):
            p.v_cvt_pk_bf16_f32(v(pk + i), v(H + 2 * i), v(H + 2 * i + 1))
        self.transpose4(pk)
        p.v_lshlrev_b32(v(t), 10, v(self.vJ))
        p.v_lshl_add_u32(v(t), v(self.vG), 5, v(t))
        p.s_lshl_b32(s(self.sTmp), s(self.sRG), 2)
        p.s_add_u32(s(self.sTmp), s(self.sTmp), s(self.sW))
        p.s_lshl_b32(s(self.sTmp), s(self.sTmp), 14)
        p.s_add_u32(s(self.sTmp), s(self.sTmp), s(self.sCB128))
        p.buffer_store_dwordx4(v(pk, 4), v(t), s(self.sOUT, 4), s(self.sTmp), mods="offen")
        p.buffer_store_dwordx4(v(pk + 4, 4), v(t), s(self.sOUT, 4), s(self.sTmp), mods="offen offset:16")
        self.stamp("end")
        if self.o.get("stamps"):
            p.s_lshl_b32(s(self.sTmp), s(2), 2)
            p.s_add_u32(s(self.sTmp), s(self.sTmp), s(self.sW))
            p.s_lshl_b32(s(self.sTmp), s(self.sTmp), 8)
            p.s_add_u32(s(self.sTmp), s(self.sTmp), WS_BYTES)
            p.s_memrealtime(s(self.sT0, 2))
            p.wait(lgkm=0)
            p.v_writelane_b32(v(self.vStamp), s(self.sT0), 63)
            p.v_lshlrev_b32(v(t), 2, v(0))
            p.buffer_store_dword(v(self.vStamp), v(t), s(self.sWS, 4), s(self.sTmp), mods="offen")

    def build(self):
        self.prologue()
        self.phase1()
        self.phase2()
        self.phase345()
        self.phase6()
        self.phase7()
        self.p.label("L_end")
        self.p.s_endpgm()
        body = self.p.finalize()
        hdr = open("cdna_kernels/" + NAME + ".s.ref").read().split("; Override launch")[0]
        return f"""{hdr}; @launch grid=(256,1,1) block=(256,1,1) lds=163840
.amdgcn_target "amdgcn-amd-amdhsa--gfx950"
.text
.globl {NAME}_kernel
.p2align 8
.type {NAME}_kernel,@function
{NAME}_kernel:
{body}
.section .rodata,"a"
.p2align 6
.amdhsa_kernel {NAME}_kernel
  .amdhsa_next_free_vgpr 512
  .amdhsa_next_free_sgpr 102
  .amdhsa_accum_offset 256
  .amdhsa_group_segment_fixed_size 0
  .amdhsa_kernarg_size 88
  .amdhsa_user_sgpr_count 2
  .amdhsa_user_sgpr_kernarg_segment_ptr 1
  .amdhsa_system_sgpr_workgroup_id_x 1
  .amdhsa_float_denorm_mode_32 3
.end_amdhsa_kernel
"""


if __name__ == "__main__":
    opts = {}
    out = None
    for x in sys.argv[1:]:
        if x.startswith("-o"):
            out = x[2:]
        else:
            k, _, val = x.partition("=")
            opts[k] = int(val) if val else 1
    g = Gen(opts)
    text = g.build()
    open(out or "cdna_kernels/" + NAME + ".s", "w").write(text)
    if opts.get("stamps"):
        open((out or NAME) + ".stamps", "w").write("\n".join(g.stamp_names))
```

```python
import re

TRANS = ("v_exp_f32", "v_log_f32", "v_rcp_f32", "v_rsq_f32", "v_sqrt_f32", "v_sin_f32", "v_cos_f32",
         "v_rcp_iflag_f32")


def v(i, n=1):
    return f"v{i}" if n == 1 else f"v[{i}:{i+n-1}]"


def a(i, n=1):
    return f"a{i}" if n == 1 else f"a[{i}:{i+n-1}]"


def s(i, n=1):
    return f"s{i}" if n == 1 else f"s[{i}:{i+n-1}]"


def r(reg, n=1):
    return a(reg - 256, n) if reg >= 256 else v(reg, n)


_RE = re.compile(r"^(-|abs\(|\|)?([vas])(?:(\d+)|\[(\d+):(\d+)\])\)?\|?$")


def regs_of(opnd):
    o = opnd.strip()
    if o in ("vcc", "exec"):
        return {(o, 0), (o, 1)}
    if o in ("vcc_lo", "exec_lo"):
        return {(o[:-3], 0)}
    if o in ("vcc_hi", "exec_hi"):
        return {(o[:-3], 1)}
    if o == "m0":
        return {("m0", 0)}
    m = _RE.match(o)
    if not m:
        return set()
    k = m.group(2)
    if m.group(3) is not None:
        lo = hi = int(m.group(3))
    else:
        lo, hi = int(m.group(4)), int(m.group(5))
    if k == "a":
        return {("v", 256 + i) for i in range(lo, hi + 1)}
    return {(k, i) for i in range(lo, hi + 1)}


class Ins:
    __slots__ = ("op", "ops", "mods", "cls", "rd", "wr", "token", "comment", "passes", "srcc", "srcab",
                 "raw", "label", "target", "waits")

    def __init__(self, op, ops=(), mods="", token=None, comment=None):
        self.op = op
        self.ops = [str(o) for o in ops]
        self.mods = mods
        self.token = token
        self.comment = comment
        self.passes = 0
        self.srcc = set()
        self.srcab = set()
        self.raw = None
        self.label = None
        self.target = None
        self.waits = None
        self._classify()

    def text(self):
        if self.raw is not None:
            return self.raw
        t = "  " + self.op
        if self.ops:
            t += " " + ", ".join(self.ops)
        if self.mods:
            t += " " + self.mods
        if self.comment:
            t += "   ; " + self.comment
        return t

    def _classify(self):
        op, ops = self.op, self.ops
        R = lambda idxs: set().union(*[regs_of(ops[i]) for i in idxs]) if idxs else set()
        n = len(ops)
        self.rd, self.wr = set(), set()
        if op.startswith("v_mfma"):
            self.cls = "mfma"
            self.wr = R([0])
            self.srcab = R([1, 2])
            self.srcc = R([3])
            self.rd = self.srcab | self.srcc
            if "32x32x16" in op:
                self.passes = 8
            elif "16x16x32" in op:
                self.passes = 4
            else:
                raise ValueError(op)
        elif op.startswith("v_"):
            self.cls = "valu"
            if op.startswith("v_cmp"):
                self.wr = R([0])
                self.rd = R(range(1, n))
                if op.startswith("v_cmpx"):
                    self.wr |= regs_of("exec")
            elif op.startswith("v_permlane16_swap") or op.startswith("v_permlane32_swap"):
                self.wr = R([0, 1])
                self.rd = R([0, 1])
            elif op.startswith(("v_add_co", "v_sub_co", "v_addc_co", "v_subb_co")):
                self.wr = R([0, 1])
                self.rd = R(range(2, n))
            elif op == "v_nop":
                pass
            else:
                self.wr = R([0])
                self.rd = R(range(1, n))
                if op.startswith(("v_fmac", "v_dot2c", "v_pk_fmac", "v_writelane")) or "dpp" in op or \
                        "row_" in self.mods or "quad_perm" in self.mods:
                    self.rd |= R([0])
                if op.startswith("v_cndmask") and n == 3:
                    self.rd |= regs_of("vcc")
        elif op.startswith("ds_"):
            self.cls = "ds"
            if op.startswith(("ds_read", "ds_bpermute", "ds_permute", "ds_swizzle")):
                self.wr = R([0])
                self.rd = R(range(1, n))
            else:
                self.rd = R(range(n))
        elif op.startswith(("buffer_", "global_")):
            self.cls = "vmem"
            lds = " lds" in " " + self.mods or op.startswith("global_load_lds")
            if op.startswith("buffer_load"):
                if lds:
                    self.rd = R(range(n)) | {("m0", 0)}
                else:
                    self.wr = R([0])
                    self.rd = R(range(1, n))
            elif op.startswith("global_load"):
                if lds:
                    self.rd = R(range(n)) | {("m0", 0)}
                else:
                    self.wr = R([0])
                    self.rd = R(range(1, n))
            elif "atomic" in op:
                self.rd = R(range(n))
                if "sc0" in self.mods:
                    self.wr = R([0])
            else:
                self.rd = R(range(n))
        elif op.startswith("s_"):
            self.cls = "salu"
            if op in ("s_waitcnt", "s_nop", "s_barrier", "s_endpgm", "s_sleep", "s_setprio", "s_branch") or \
                    op.startswith("s_cbranch"):
                self.cls = "ctl"
                if op.startswith("s_cbranch") or op == "s_branch":
                    self.target = ops[0]
            elif op.startswith(("s_load", "s_memtime", "s_memrealtime", "s_buffer_load")):
                self.cls = "smem"
                self.wr = R([0])
                self.rd = R(range(1, n))
            elif op.startswith("s_cmp") or op.startswith("s_bitcmp"):
                self.rd = R(range(n))
            elif op.startswith("s_getreg") or op.startswith("s_getpc"):
                self.wr = R([0])
            else:
                self.wr = R([0])
                self.rd = R(range(1, n))
                if "saveexec" in op:
                    self.wr |= regs_of("exec")
                    self.rd |= regs_of("exec")
                if op.startswith(("s_addk", "s_mulk")):
                    self.rd |= R([0])
        else:
            self.cls = "other"


class Prog:
    def __init__(self):
        self.ins = []
        self._tok = 0

    def emit(self, op, *ops, mods="", token=None, c=None):
        i = Ins(op, ops, mods, token, c)
        self.ins.append(i)
        return i

    def __getattr__(self, name):
        if name.startswith(("v_", "s_", "ds_", "buffer_", "global_")):
            return lambda *ops, **kw: self.emit(name, *ops, **kw)
        raise AttributeError(name)

    def add(self, items):
        if isinstance(items, Ins):
            self.ins.append(items)
        else:
            self.ins.extend(items)

    def label(self, name):
        i = Ins("label")
        i.cls = "label"
        i.label = name
        i.raw = name + ":"
        self.ins.append(i)
        return i

    def raw(self, text):
        i = Ins("raw")
        i.cls = "raw"
        i.raw = text
        self.ins.append(i)
        return i

    def comment(self, text):
        return self.raw("  ; " + text)

    def new_token(self):
        self._tok += 1
        return self._tok

    def wait_vm(self, token):
        i = Ins("waittok")
        i.cls = "waittok"
        i.waits = ("vm", token)
        self.ins.append(i)
        return i

    def wait_ds(self, token):
        i = Ins("waittok")
        i.cls = "waittok"
        i.waits = ("ds", token)
        self.ins.append(i)
        return i

    def wait(self, vm=None, lgkm=None):
        parts = []
        if vm is not None:
            parts.append(f"vmcnt({vm})")
        if lgkm is not None:
            parts.append(f"lgkmcnt({lgkm})")
        i = Ins("s_waitcnt", [" ".join(parts)])
        i.waits = ("explicit", vm, lgkm)
        self.ins.append(i)
        return i

    def sub(self):
        p = Prog()
        p._tok = None
        p.new_token = self.new_token
        return p

    def finalize(self):
        self.ins = insert_waits(self.ins)
        self.ins = insert_nops(self.ins)
        return "\n".join(i.text() for i in self.ins) + "\n"


def mk_wait(vm, lgkm):
    parts = []
    if vm is not None:
        parts.append(f"vmcnt({vm})")
    if lgkm is not None:
        parts.append(f"lgkmcnt({lgkm})")
    i = Ins("s_waitcnt", [" ".join(parts)])
    i.waits = ("explicit", vm, lgkm)
    return i


def insert_waits(ins):
    out = []
    vm, ds = [], []
    smem = set()
    snap = {}
    seen_labels = set()
    dead = False
    for i in ins:
        if i.cls == "label":
            seen_labels.add(i.label)
            if dead:
                dead = False
                if i.label in snap:
                    svm, sds, ssm, _, _ = snap[i.label].pop(0)
                    vm, ds, smem = list(svm), list(sds), set(ssm)
                else:
                    vm, ds, smem = [], [], set()
            if i.label in snap:
                for (svm, sds, ssm, nvm, nds) in snap.pop(i.label):
                    newvm = [e for e in vm if not any(e is x for x in svm)]
                    newds = [e for e in ds if not any(e is x for x in sds)]
                    if newvm:
                        vm = [(e[0], e[1], True) for e in svm] + [(e[0], e[1], True) for e in newvm]
                    elif len(svm) > len(vm):
                        vm = list(svm)
                    if newds:
                        ds = [(e[0], e[1], True) for e in sds] + [(e[0], e[1], True) for e in newds]
                    elif len(sds) > len(ds):
                        ds = list(sds)
                    smem |= ssm
            out.append(i)
            continue
        if i.cls in ("raw",):
            out.append(i)
            continue
        need_vm = need_ds = None
        if i.cls == "waittok":
            kind, tok = i.waits
            q = vm if kind == "vm" else ds
            idx = [k for k, e in enumerate(q) if e[1] == tok]
            if idx:
                n = len(q) - 1 - idx[-1]
                if any(e[2] for e in q):
                    n = 0
                if kind == "vm":
                    need_vm = n
                else:
                    need_ds = n
        else:
            touched = i.rd | i.wr
            for k, e in enumerate(vm):
                if e[0] & touched:
                    need_vm = len(vm) - 1 - k
            if need_vm is not None and any(e[2] for e in vm):
                need_vm = 0
            for k, e in enumerate(ds):
                if e[0] & touched:
                    need_ds = len(ds) - 1 - k
            if need_ds is not None and any(e[2] for e in ds):
                need_ds = 0
            if smem & touched:
                need_ds = 0
        if need_ds is not None and smem:
            need_ds = 0
        if need_vm is not None and need_vm > 62:
            need_vm = 62
        if need_ds is not None and need_ds > 14:
            need_ds = 14
        if need_vm is not None or need_ds is not None:
            out.append(mk_wait(need_vm, need_ds))
            if need_vm is not None:
                vm = vm[len(vm) - need_vm:] if need_vm else []
            if need_ds is not None:
                ds = ds[len(ds) - need_ds:] if need_ds else []
                if need_ds == 0:
                    smem = set()
        if i.cls == "waittok":
            continue
        if i.op == "s_waitcnt":
            _, wvm, wl = i.waits
            if wvm is not None and len(vm) > wvm:
                vm = vm[len(vm) - wvm:] if wvm else []
            if wl is not None:
                if wl == 0:
                    ds = []
                    smem = set()
                elif not smem and len(ds) > wl:
                    ds = ds[len(ds) - wl:]
        elif i.cls == "vmem":
            vm.append((set(i.wr), i.token, False))
        elif i.cls == "ds":
            ds.append((set(i.wr), i.token, False))
        elif i.cls == "smem":
            smem |= i.wr
        if i.target is not None and i.target not in seen_labels:
            snap.setdefault(i.target, []).append((list(vm), list(ds), set(smem), len(vm), len(ds)))
        if i.op in ("s_branch", "s_endpgm"):
            dead = True
        out.append(i)
    return out


def _states(i):
    if i.cls in ("label", "raw"):
        return 0
    if i.op == "s_nop":
        return int(i.ops[0]) + 1
    return 1


def _need(p, c):
    n = 0
    vw = {x for x in p.wr if x[0] == "v"}
    if p.cls == "valu":
        sw = {x for x in p.wr if x[0] in ("s", "vcc")}
        if c.cls == "mfma" and vw & c.rd:
            n = max(n, 2)
        if c.cls == "valu":
            if c.op.startswith("v_permlane") and vw & c.rd:
                n = max(n, 2)
            if c.op.startswith(("v_readlane", "v_readfirstlane")) and vw & c.rd:
                n = max(n, 1)
            if ("dpp" in c.op or "row_" in c.mods or "quad_perm" in c.mods) and vw & c.rd:
                n = max(n, 2)
            if p.op.startswith(TRANS) and (vw & c.rd):
                n = max(n, 1)
            if sw & c.rd:
                n = max(n, 4 if c.op.startswith(("v_readlane", "v_writelane")) else 2)
            if p.op.startswith("v_dot2") and (vw & (c.rd | c.wr)):
                n = max(n, 3)
            if ("op_sel" in p.mods and not p.op.startswith("v_pk_")) or "sdwa" in p.op or "dst_sel" in p.mods:
                if vw & (c.rd | c.wr):
                    n = max(n, 1)
        if c.cls == "vmem" and sw & c.rd:
            n = max(n, 5)
        if c.cls in ("salu", "smem", "ctl") and sw & c.rd:
            n = max(n, 1)
        if any(x[0] == "exec" for x in p.wr):
            if c.cls == "mfma" or c.op.startswith(("v_permlane", "v_readlane", "v_readfirstlane", "v_writelane")):
                n = max(n, 4)
            if "dpp" in c.op or "row_" in c.mods:
                n = max(n, 5)
    elif p.cls == "mfma":
        big = p.passes == 8
        if c.cls == "mfma":
            if vw & c.srcab:
                n = max(n, 12 if big else 8)
            if vw & c.srcc:
                if not (c.srcc == vw and c.passes == p.passes):
                    n = max(n, 10 if big else 6)
            elif vw & c.wr:
                n = max(n, 10 if big else 6)
        elif c.cls in ("valu", "vmem", "ds"):
            if vw & (c.rd | c.wr):
                n = max(n, 12 if big else 8)
            if c.cls == "valu" and p.srcc & c.wr:
                n = max(n, 7 if big else 3)
            if c.cls in ("vmem", "ds") and p.srcc & c.wr:
                n = max(n, 7 if big else 3)
    elif p.cls == "salu":
        if ("m0", 0) in p.wr and c.cls == "vmem" and ("m0", 0) in c.rd:
            n = max(n, 1)
    elif p.cls == "vmem":
        if ("store" in p.op) and ("x4" in p.op or "x3" in p.op):
            data = regs_of(p.ops[0]) if p.op.startswith("buffer") else regs_of(p.ops[1])
            if data & c.wr:
                n = max(n, 2)
    return n


def insert_nops(ins):
    out = []
    hist = []
    snap = {}
    cur = [[]]
    seen = set()
    W = 24
    for i in ins:
        if i.cls == "label":
            seen.add(i.label)
            if i.label in snap:
                cur = cur + snap.pop(i.label)
            out.append(i)
            continue
        if i.cls == "raw":
            out.append(i)
            continue
        need = 0
        for h in cur:
            d = 0
            for p in reversed(h):
                k = _need(p, i)
                if k > d:
                    need = max(need, k - d)
                d += _states(p)
                if d >= 20:
                    break
        while need > 0:
            k = min(need, 16)
            nop = Ins("s_nop", [str(k - 1)])
            out.append(nop)
            for h in cur:
                h.append(nop)
            need -= k
        out.append(i)
        for h in cur:
            h.append(i)
            if len(h) > W:
                del h[0]
        if len(cur) > 1:
            base = cur[0]
            cur = [base] + [h for h in cur[1:] if not (len(h) >= W and len(base) >= W and
                                                       all(x is y for x, y in zip(h[-W:], base[-W:])))]
        if i.target is not None and i.target not in seen:
            snap.setdefault(i.target, []).extend([list(h) for h in cur])
        if i.op in ("s_branch", "s_endpgm"):
            cur = [[]]
    return out


def interleave(main, fill, start=0, per=None):
    out = []
    n = len(main) - start
    k = 0
    for idx, m in enumerate(main):
        out.extend(m if isinstance(m, list) else [m])
        if idx >= start:
            j = idx - start + 1
            tgt = len(fill) * j // n if per is None else min(len(fill), per * j)
            while k < tgt:
                f = fill[k]
                out.extend(f if isinstance(f, list) else [f])
                k += 1
    while k < len(fill):
        f = fill[k]
        out.extend(f if isinstance(f, list) else [f])
        k += 1
    return out
```

```python
import copy
import math
import struct
import sys
from asmlib import *

NAME = "sequential_preLN__sliding_block__mixer_s_mlp__prompt"
KB = 1024

RGS = 480 * KB
O_OFF, H_OFF, T_OFF, F_OFF, X1_OFF = 0, 64 * KB, 128 * KB, 192 * KB, 256 * KB
K_OFF, V_OFF = 320 * KB, 384 * KB
STH_OFF, STX_OFF = 448 * KB, 452 * KB
TH_OFF = 456 * KB
RDY_OFF = 472 * KB
RDY2_OFF = RDY_OFF + 4096
RDY3_OFF = RDY_OFF + 5120
UFL_OFF = RDY_OFF + 6144
WS_BYTES = 32 * RGS
OOB = 0x80000000
MISC = 128 * KB
R0, R1 = 0, 64 * KB


def f2u(x):
    return "0x%08x" % struct.unpack("<I", struct.pack("<f", x))[0]


LOG2E = 1.4426950408889634
EPS = 1e-5
NEG_BIG = -1e30
DEF = dict(n0=12, npre=10, la=9, gap=6, gap6=6, tl=0, d3=60, d4=65, d5=65, d6=45, la6=10, la7=11, touch=0, r2p=6, r2l=24, p7e=7, wsf=0, wsa=0, wsb=12, pf=0, pg=1, plan='xG36', gstep=8, tstep=13, t3a=8, t3b=20, t4=1, rot=1, rx=1, pr=4, qq='x0000000002222440', g2p=34, hstep=14, f1=3, l1=9, mk1=2, mu=3, mr=1, gb=-1, bq='x333333333333333333', mq='x0000110000000000', hq=2, wt=0, fap=60, fal=60, fbp=70, fcp=3, fld=11)


class Alloc:
    def __init__(self, lo, hi):
        self.free = set(range(lo, hi))
        self.low = len(self.free)

    def get(self, n=1, align=None, low=False):
        align = align or (1 if n == 1 else 2 if n == 2 else 4)
        for b in sorted(self.free, reverse=(n <= 2 and not low)):
            if b % align == 0 and all((b + i) in self.free for i in range(n)):
                for i in range(n):
                    self.free.remove(b + i)
                self.low = min(self.low, len(self.free))
                return b
        raise RuntimeError(f"out of registers for {n} (free {len(self.free)}): {sorted(self.free)}")

    def put(self, b, n=1):
        for i in range(n):
            assert (b + i) not in self.free, (b, i)
            self.free.add(b + i)


def atoms(ins):
    out, i = [], 0
    ins = flat(ins)
    while i < len(ins):
        j = i
        if ins[i].op.startswith(("s_cmp", "s_bitcmp")):
            k = i + 1
            while k < len(ins) and not ins[k].op.startswith(("s_cmp", "s_bitcmp", "s_add", "s_sub", "s_and", "s_or",
                                                             "s_lsh", "s_xor", "s_max", "s_min")):
                if ins[k].op.startswith(("s_cselect", "s_cbranch_scc")):
                    j = k
                k += 1
        out.append(ins[i:j + 1])
        i = j + 1
    return out


def flat(items):
    out = []
    for x in items:
        out.extend(x if isinstance(x, list) else [x])
    return out


class Gen:
    def __init__(self, opts):
        self.o = dict(DEF)
        self.o.update(opts)
        self.p = Prog()
        self.cold = []
        self.V = Alloc(1, 256)
        self.A = Alloc(256, 512)
        self.S = Alloc(4, 100)
        self.nlab = [0]
        self.nstamp = 0
        self.stamp_names = []
        self.fast = True

    def lab(self, base):
        self.nlab[0] += 1
        return f"L_{base}_{self.nlab[0]}"

    def stamp(self, name, q=None):
        if not self.o.get("stamps"):
            return
        p = q or self.p
        k = self.nstamp
        self.nstamp += 1
        if self.fast:
            self.stamp_names.append(name)
        p.s_memtime(s(self.sT0, 2))
        p.wait(lgkm=0)
        p.s_and_b32(s(self.sT0), s(self.sT0), "0xffffff")
        p.s_lshl_b32(s(self.sT0 + 1), s(self.sSpin), 24)
        p.s_or_b32(s(self.sT0), s(self.sT0), s(self.sT0 + 1))
        p.v_writelane_b32(v(self.vStamp), s(self.sT0), k)

    def st(self, extra=""):
        return extra if self.fast else extra + " sc1"

    def dma(self, voff, srd, soff, m0=None, imm=0, token=None, pre=None):
        q = self.p.sub()
        if pre is not None:
            pre(q)
        if m0 is not None:
            if m0[0] is None:
                q.s_mov_b32("m0", m0[1])
            else:
                q.s_add_u32("m0", s(m0[0]), m0[1])
        if soff is not None:
            q.s_add_u32(s(self.sDma), s(soff[0]), soff[1])
        q.buffer_load_dwordx4(v(voff), s(srd, 4), s(self.sDma),
                              mods="offen " + (f"offset:{imm} " if imm else "") + "lds", token=token)
        return q.ins

    def marker_max(self, q, regs, t):
        regs = list(regs)
        for k, tmp in ((0, t), (1, self.vTmp)):
            if len(regs) > k and regs[k] >= 256:
                q.v_accvgpr_read_b32(v(tmp), r(regs[k]))
                regs[k] = tmp
        if len(regs) == 1:
            return regs[0]
        if len(regs) == 2:
            q.v_max_u32(v(t), v(regs[0]), v(regs[1]))
            return t
        q.v_max3_u32(v(t), v(regs[0]), v(regs[1]), v(regs[2]))
        rest = regs[3:]
        while rest:
            if len(rest) == 1:
                q.v_max_u32(v(t), v(t), v(rest[0]))
                rest = []
            else:
                q.v_max3_u32(v(t), v(t), v(rest[0]), v(rest[1]))
                rest = rest[2:]
        return t

    def check3(self, regs, reload, left=0, code=0):
        L, Rt, Gv = self.lab("retry"), self.lab("ret"), self.lab("go")
        q0, q1, q2 = self.p.sub(), self.p.sub(), self.p.sub()
        x = self.marker_max(q0, regs, self.vChk)
        q1.v_cmp_eq_u32("vcc", -1, v(x))
        q2.s_cbranch_vccnz(L)
        q2.label(Rt)
        c = self.p.sub()
        c.label(L)
        c.s_sub_u32(s(self.sSpin), s(self.sSpin), 1)
        c.s_cbranch_scc1(Gv)
        z = self.p.sub()
        reload(z)
        for i in z.ins:
            if i.cls == "vmem":
                i.wr = set()
        c.add(z.ins)
        c.wait(vm=left)
        x = self.marker_max(c, regs, self.vChk)
        c.v_cmp_eq_u32("vcc", -1, v(x))
        c.s_cbranch_vccnz(L)
        c.s_branch(Rt)
        c.label(Gv)
        self.giveup(c, code)
        c.s_branch(Rt)
        self.cold.append(c.ins)
        return [q0.ins, q1.ins, q2.ins]

    def check(self, regs, reload, left=0, code=0):
        return flat(self.check3(regs, reload, left, code))

    def giveup(self, c, code):
        c.s_mov_b32(s(self.sSpin), 0)
        if self.o.get("dbg"):
            c.v_mov_b32(v(self.vChk), code)
            c.v_mov_b32(v(self.vTmp), 16)
            c.buffer_store_dword(v(self.vChk), v(self.vTmp), s(self.sDBG, 4), 0, mods="offen")
        c.wait(vm=0)

    def rdy_check(self, vw, reload):
        p = self.p
        q = p.sub()
        L, Rt, Gv = self.lab("rdy"), self.lab("rret"), self.lab("rgo")

        def test(z):
            z.v_xor_b32(v(self.vChk), s(self.sNonce), v(vw[0]))
            for x in vw[1:]:
                z.v_xor_b32(v(self.vTmp), s(self.sNonce), v(x))
                z.v_or_b32(v(self.vChk), v(self.vChk), v(self.vTmp))
            z.v_cmp_lt_u32("vcc", 31, v(self.vChk))
            z.s_cbranch_vccnz(L)
        test(q)
        q.label(Rt)
        c = p.sub()
        c.label(L)
        c.s_sub_u32(s(self.sSpin), s(self.sSpin), 1)
        c.s_cbranch_scc1(Gv)
        reload(c)
        c.wait(vm=0)
        test(c)
        c.s_branch(Rt)
        c.label(Gv)
        self.giveup(c, 0x20)
        c.s_branch(Rt)
        self.cold.append(c.ins)
        return q.ins

    def line_store(self, q, soff):
        q.v_mov_b32(v(self.vChk), s(self.sWord))
        q.v_lshlrev_b32(v(self.vTmp), 2, v(0))
        q.s_mov_b32("exec_hi", 0)
        q.buffer_store_dword(v(self.vChk), v(self.vTmp), s(self.sWS, 4), s(soff), mods="offen sc1")
        q.s_mov_b32("exec_hi", -1)

    def transpose4(self, q, b):
        for i in range(2):
            q.v_permlane16_swap_b32(v(b + i), v(b + 2 + i))
            q.v_permlane16_swap_b32(v(b + 4 + i), v(b + 6 + i))
        for i in range(2):
            q.v_permlane32_swap_b32(v(b + i), v(b + 4 + i))
            q.v_permlane32_swap_b32(v(b + 2 + i), v(b + 6 + i))

    def prologue(self):
        p, S, V = self.p, self.S, self.V
        p.s_cmp_ge_u32(s(2), 256)
        p.s_cbranch_scc1("L_end")
        srds = dict(X=(0, 2048 * 512 * 2), WQKV=(8, 512 * 1536 * 2), DBG=(72, 256),
                    WS=(80, WS_BYTES + (8 << 20 if self.o.get("stamps") else 0)),
                    WO=(16, 512 * 512 * 2), W1=(32, 512 * 512 * 2), W2=(40, 512 * 512 * 2),
                    W3=(48, 512 * 1792 * 2), W4=(56, 1792 * 512 * 2), OUT=(64, 2048 * 512 * 2))
        for k, (off, n) in srds.items():
            d = S.get(4, 4)
            setattr(self, "s" + k, d)
            p.s_load_dwordx2(s(d, 2), s(0, 2), off)
        self.sT0 = S.get(2, 2)
        sN0 = S.get(2, 2)
        p.s_memrealtime(s(sN0, 2))
        self.sW, self.sRG, self.sCB, self.sNB = S.get(), S.get(), S.get(), S.get()
        self.sTmp, self.sTmp2, self.sSpin, self.sNonce, self.sDma = S.get(), S.get(), S.get(), S.get(), S.get()
        self.sRGB, self.sCB128, self.sWord = S.get(), S.get(), S.get()
        self.vTmp, self.vChk = V.get(), V.get()
        self.vL16, self.vJ, self.vG = V.get(), V.get(), V.get()
        p.s_lshr_b32(s(3), s(2), 3)
        if self.o.get("cbx"):
            p.s_xor_b32(s(3), s(3), self.o["cbx"])
        if self.o["touch"]:
            c = S.get(2, 2)
            va = V.get(2)
            p.s_getpc_b64(s(c, 2))
            p.label("L_pc")
            p.s_cmp_ge_u32(s(3), "(L_slow-L_pc+32767)/32768")
            p.s_cbranch_scc1("L_notouch")
            p.s_lshl_b32(s(self.sTmp), s(3), 15)
            p.v_lshlrev_b32(v(self.vTmp), 7, v(0))
            p.v_add_u32(v(self.vTmp), s(self.sTmp), v(self.vTmp))
            p.v_min_u32(v(self.vTmp), "L_slow-L_pc-4", v(self.vTmp))
            p.v_mov_b32(v(va + 1), s(c + 1))
            p.v_add_co_u32(v(va), "vcc", s(c), v(self.vTmp))
            p.v_addc_co_u32(v(va + 1), "vcc", 0, v(va + 1), "vcc")
            p.raw(f"  global_load_dword {v(self.vChk)}, {v(va, 2)}, off")
            p.label("L_notouch")
            S.put(c, 2)
            V.put(va, 2)
        if self.o.get("stamps"):
            self.vStamp = V.get()
            p.v_mov_b32(v(self.vStamp), 0)
        p.v_lshrrev_b32(v(self.vTmp), 6, v(0))
        p.v_and_b32(v(0), 63, v(0))
        p.v_readfirstlane_b32(s(self.sW), v(self.vTmp))
        p.s_and_b32(s(self.sCB), s(3), 7)
        p.s_and_b32(s(self.sNB), s(3), 15)
        p.s_lshr_b32(s(3), s(3), 3)
        p.s_and_b32(s(self.sRG), s(2), 7)
        p.s_lshl_b32(s(self.sRG), s(self.sRG), 2)
        p.s_add_u32(s(self.sRG), s(self.sRG), s(3))
        p.s_mul_i32(s(self.sRGB), s(self.sRG), RGS)
        p.s_lshl_b32(s(self.sCB128), s(self.sCB), 7)
        p.s_mov_b32(s(self.sSpin), 1 << 16)
        p.v_lshlrev_b32(v(self.vL16), 4, v(0))
        p.v_and_b32(v(self.vJ), 15, v(0))
        p.v_lshrrev_b32(v(self.vG), 4, v(0))
        for k, (off, n) in srds.items():
            d = getattr(self, "s" + k)
            p.s_mov_b32(s(d + 2), n)
            p.s_mov_b32(s(d + 3), "0x20000")
        self.sN0 = sN0

    def publish_nonce(self, p):
        p.s_or_b32(s(self.sN0 + 1), s(2), s(self.sW))
        p.s_cmp_eq_u32(s(self.sN0 + 1), 0)
        p.s_cselect_b32(s(self.sN0 + 1), 0, hex(OOB))
        p.v_mov_b32(v(self.vTmp), s(self.sN0))
        p.v_or_b32(v(self.vTmp), 1, v(self.vTmp))
        p.s_mov_b64("exec", 1)
        p.buffer_store_dword(v(self.vTmp), "off", s(self.sDBG, 4), s(self.sN0 + 1), mods="sc1")
        p.s_mov_b64("exec", -1)
        if self.o.get("stamps"):
            p.v_writelane_b32(v(self.vStamp), s(self.sN0), 62)
        self.S.put(self.sN0, 2)

    def touch(self, srd, voff, soff, nl, token=None):
        q = self.p.sub()
        if nl < 32:
            q.s_mov_b64("exec", hex((1 << nl) - 1))
        elif nl < 64:
            q.s_mov_b32("exec_hi", hex((1 << (nl - 32)) - 1))
        if isinstance(soff, tuple):
            q.s_add_u32(s(self.sPf), s(soff[0]), soff[1])
            soff = s(self.sPf)
        q.buffer_load_dword(r(self.vSink), v(voff), s(srd, 4), soff, mods="offen", token=token)
        if nl < 64:
            q.s_mov_b64("exec", -1)
        for i in q.ins:
            if i.cls == "vmem":
                i.wr = set()
        return q.ins

    def touch_setup(self):
        p, S, V = self.p, self.S, self.V
        self.aAddr = self.A.get(6, 4)
        self.vSink, self.vL128 = self.aAddr + 5, V.get()
        self.sPf, self.sGW = S.get(), S.get()
        gw = self.sGW
        p.s_lshr_b32(s(gw), s(2), 3)
        p.s_lshl_b32(s(gw), s(gw), 2)
        p.s_add_u32(s(gw), s(gw), s(self.sW))
        p.v_lshlrev_b32(v(self.vL128), 7, v(0))
        sx, skv, sg = S.get(), S.get(), S.get()
        vq = V.get()
        p.s_and_b32(s(sx), s(2), 7)
        p.s_lshl_b32(s(sx), s(sx), 7)
        p.s_add_u32(s(sx), s(sx), s(gw))
        p.s_lshl_b32(s(sx), s(sx), 11)
        p.s_mul_i32(s(skv), s(gw), 3072)
        p.s_add_u32(s(skv), s(skv), 1024)
        p.v_lshrrev_b32(v(vq), 3, v(0))
        p.v_mul_u32_u24(v(vq), 3072 - 1024, v(vq))
        p.v_add_u32(v(vq), v(vq), v(self.vL128))
        out = dict(x=[self.touch(self.sX, self.vL128, s(sx), 16)])
        for i, ch in enumerate("abcd"):
            out[ch] = [self.touch(self.sWQKV, self.vL128, (skv, i * 128 * 3072), 16)]
        q = p.sub()
        q.s_mul_i32(s(sx), s(gw), 4 * 3072)
        out["q"] = [q.ins + self.touch(self.sWQKV, vq, s(sx), 32)]
        q = p.sub()
        q.s_lshl_b32(s(sx), s(2), 2)
        q.s_add_u32(s(sx), s(sx), s(self.sW))
        q.s_mul_i32(s(sx), s(sx), 1536)
        out["G"] = [q.ins + self.touch(self.sWQKV, self.vL128, s(sx), 12)]
        self.vL1K = V.get()
        p.v_lshlrev_b32(v(self.vL1K), 10, v(0))
        p.v_or_b32(v(self.vL1K), 384, v(self.vL1K))
        q = p.sub()
        q.s_mul_i32(s(sx), s(gw), 12 * 1024)
        out["3"] = [q.ins + self.touch(self.sWQKV, self.vL1K, s(sx), 12)]
        q = p.sub()
        q.s_lshl_b32(s(sx), s(2), 1)
        q.s_lshr_b32(s(skv), s(self.sW), 1)
        q.s_add_u32(s(sx), s(sx), s(skv))
        q.s_mul_i32(s(sx), s(sx), 3072)
        q.s_and_b32(s(skv), s(self.sW), 1)
        q.s_lshl_b32(s(skv), s(skv), 9)
        q.s_add_u32(s(sx), s(sx), s(skv))
        out["Q"] = [q.ins + self.touch(self.sWQKV, self.vL128, s(sx), 4)]
        c = S.get(4, 4)
        self.chip_split(p, c, sg, ((self.sWO, 512), (self.sW1, 512)), 8)
        out["g"] = [self.touch(c, self.vL128, s(sg), 8)] if self.o["pg"] else []
        q = p.sub()
        q.s_and_b32(s(sx), s(self.sRG), -2)
        q.s_mul_i32(s(sx), s(sx), RGS)
        q.s_add_u32(s(sx), s(sx), UFL_OFF)
        out["f"] = [q.ins + self.touch(self.sWS, self.vL128, s(sx), 6)]
        self.touch_free = ([vq, self.vL1K], [sx, skv, sg], c)
        self.ntouch = len(p.ins)
        return out

    def chip_split(self, p, c, sg, mats, nl):
        p.s_lshl_b32(s(sg), s(2), 2)
        p.s_add_u32(s(sg), s(sg), s(self.sW))
        p.s_mul_i32(s(sg), s(sg), nl * 128)
        p.s_mov_b64(s(c, 2), s(mats[0][0], 2))
        p.s_mov_b32(s(c + 2), mats[0][1] * KB)
        p.s_mov_b32(s(c + 3), "0x20000")
        for srd, n in mats[1:]:
            p.s_cmp_ge_u32(s(sg), s(c + 2))
            p.s_cselect_b64(s(c, 2), s(srd, 2), s(c, 2))
            p.s_cselect_b32(s(self.sTmp), s(c + 2), 0)
            p.s_cselect_b32(s(c + 2), n * KB, s(c + 2))
            p.s_sub_u32(s(sg), s(sg), s(self.sTmp))

    def g2(self):
        cg, sg = self.sG2 = self.S.get(4, 4), self.S.get()
        q = self.p.sub()
        self.chip_split(q, cg, sg, ((self.sW2, 512), (self.sW3, 1792), (self.sW4, 1792)), 32)
        q.v_lshlrev_b32(v(self.vTmp), 7, v(0))
        return q.ins + self.touch(cg, self.vTmp, s(sg), 32) if self.o["pg"] else []

    def touch_w(self, srd, nbytes, part=None):
        if self.o["pf"] == 2:
            n = nbytes // 1024 // 128
            q = self.p.sub()
            q.s_mul_i32(s(self.sPf), s(self.sGW), n * 1024)
            return [q.ins + self.touch(srd, self.vL1K, s(self.sPf), n)] + ([[]] if n > 8 else [])
        lines = nbytes // 128 // 128
        out = []
        lo = 0
        while lo < lines:
            n = min(64, lines - lo)
            q = self.p.sub()
            q.s_mul_i32(s(self.sPf), s(self.sGW), lines * 128)
            if lo:
                q.s_add_u32(s(self.sPf), s(self.sPf), lo * 128)
            out.append(q.ins + self.touch(srd, self.vL128, s(self.sPf), n))
            lo += n
        return out if self.o["pf"] else [[] for _ in out]

    def w_dma_voff(self, p, dst, rowstride, mapping, qconst=None, swz32=False, col=None):
        V = self.V
        rho, pos, t, f = V.get(), V.get(), V.get(), V.get()
        p.v_lshrrev_b32(v(rho), 3, v(0))
        p.v_and_b32(v(pos), 7, v(0))
        if qconst is None:
            p.s_mov_b32(s(self.sTmp2), s(self.sW))
        else:
            p.s_mov_b32(s(self.sTmp2), qconst)
        p.v_bfe_u32(v(f), v(rho), 1, 1)
        if swz32:
            p.v_lshlrev_b32(v(f), 1, v(f))
        else:
            p.s_and_b32(s(self.sTmp), s(self.sTmp2), 1)
            p.s_lshl_b32(s(self.sTmp), s(self.sTmp), 1)
            p.v_or_b32(v(f), s(self.sTmp), v(f))
        p.v_lshlrev_b32(v(f), 1, v(f))
        p.v_xor_b32(v(pos), v(pos), v(f))
        p.v_lshlrev_b32(v(pos), 4, v(pos))
        if mapping == "nat":
            p.s_lshl_b32(s(self.sTmp), s(self.sTmp2), 3)
            p.v_add_u32(v(t), s(self.sTmp), v(rho))
        elif mapping == "m32":
            p.v_and_b32(v(t), 3, v(rho))
            p.v_lshrrev_b32(v(f), 2, v(rho))
            p.v_lshl_add_u32(v(t), v(f), 3, v(t))
            p.s_lshr_b32(s(self.sTmp), s(self.sTmp2), 1)
            p.s_lshl_b32(s(self.sTmp), s(self.sTmp), 4)
            p.s_and_b32(s(self.sTmp2), s(self.sTmp2), 1)
            p.s_lshl_b32(s(self.sTmp2), s(self.sTmp2), 2)
            p.s_add_u32(s(self.sTmp), s(self.sTmp), s(self.sTmp2))
            p.v_add_u32(v(t), s(self.sTmp), v(t))
        elif mapping == "m16":
            p.v_and_b32(v(t), 3, v(rho))
            p.v_lshrrev_b32(v(f), 2, v(rho))
            p.v_lshl_add_u32(v(t), v(f), 4, v(t))
            p.s_lshl_b32(s(self.sTmp), s(self.sTmp2), 2)
            p.v_add_u32(v(t), s(self.sTmp), v(t))
        p.s_mov_b32(s(self.sTmp), rowstride)
        p.v_mad_u32_u24(v(dst), v(t), s(self.sTmp), v(pos))
        if col is not None:
            p.v_add_u32(v(dst), s(col), v(dst))
        for x in (rho, pos, t, f):
            V.put(x)

    def w_read_addr16(self, p, dst, unit_const=None, base=0, gshift=12, swz32=False):
        V = self.V
        r_, f = V.get(), V.get()
        p.v_bfe_u32(v(r_), v(0), 2, 2)
        if swz32:
            p.v_and_b32(v(f), 2, v(r_))
        else:
            p.v_lshrrev_b32(v(f), 1, v(r_))
            p.v_and_b32(v(dst), 1, v(self.vG))
            p.v_lshl_or_b32(v(f), v(dst), 1, v(f))
        p.v_xor_b32(v(f), s(self.sW) if unit_const is None else unit_const, v(f))
        p.v_lshlrev_b32(v(f), 5, v(f))
        p.v_lshl_add_u32(v(f), v(r_), 7, v(f))
        p.v_lshl_add_u32(v(f), v(self.vG), gshift, v(f))
        p.v_and_b32(v(r_), 3, v(0))
        p.v_lshl_add_u32(v(dst), v(r_), 3, v(f))
        if base:
            p.v_add_u32(v(dst), base, v(dst))
        V.put(r_)
        V.put(f)

    @staticmethod
    def img(st):
        return (st // 4) * 16384 + (st % 4) * 1024

    def w_image(self, voff, srd, const, rowstride, ldsbase, token):
        out = []
        for st in range(16):
            def pre(q, g=st // 4):
                q.s_add_u32("m0", s(self.sG[g]), s(self.sLw))
                q.s_mul_i32(s(self.sGrp), s(self.sG[g]), rowstride // 128)
                if ldsbase:
                    q.s_add_u32("m0", "m0", ldsbase)
            out.append(self.dma(voff, srd, (self.sGrp, const + (st % 4) * (32 * rowstride - 1024)), None,
                                imm=(st % 4) * 1024, token=token, pre=pre if st % 4 == 0 else None))
        return out

    def addr_O(self, p, dst, u):
        p.v_and_b32(v(dst), 1, v(self.vG))
        p.v_lshlrev_b32(v(dst), 14, v(dst))
        p.v_lshrrev_b32(v(u), 1, v(self.vG))
        p.v_lshl_add_u32(v(dst), v(u), 8, v(dst))
        p.v_lshl_add_u32(v(dst), v(self.vJ), 4, v(dst))

    def addr_stat(self, p, dst):
        p.v_lshrrev_b32(v(dst), 5, v(0))
        p.v_lshlrev_b32(v(dst), 2, v(dst))
        p.v_lshl_add_u32(v(dst), v(self.vJ), 3, v(dst))

    def addr_T(self, p, vm, vh, t, u):
        S = self.S
        sSh = S.get()
        p.s_lshr_b32(s(self.sTmp), s(self.sCB), 2)
        p.s_add_u32(s(sSh), s(self.sTmp), 1)
        p.s_sub_i32(s(self.sTmp), 0, s(sSh))
        p.s_bitcmp1_b32(s(self.sCB), 1)
        p.s_cselect_b32(s(sSh), s(self.sTmp), s(sSh))
        p.s_lshl_b32(s(self.sTmp), s(self.sW), 4)
        p.s_add_i32(s(self.sTmp), s(self.sTmp), s(sSh))
        p.v_add_u32(v(t), s(self.sTmp), v(self.vJ))
        p.v_lshrrev_b32(v(u), 4, v(t))
        p.v_lshlrev_b32(v(u), 14, v(u))
        p.v_and_b32(v(vm), 15, v(t))
        p.v_lshl_add_u32(v(vm), v(vm), 4, v(u))
        p.v_lshl_add_u32(v(vm), v(self.vG), 8, v(vm))
        p.v_mov_b32(v(u), hex(OOB))
        p.v_cmp_gt_u32("vcc", 64, v(t))
        p.v_cndmask_b32(v(vm), v(u), v(vm), "vcc")
        p.s_cmp_gt_i32(s(sSh), 0)
        p.s_cselect_b32(s(self.sTmp), 1, -1)
        p.s_add_i32(s(self.sTmp), s(self.sTmp), s(self.sRG))
        p.s_mul_i32(s(self.sTmp2), s(self.sTmp), RGS)
        p.s_add_u32(s(self.sTmp2), s(self.sTmp2), TH_OFF)
        p.s_cmp_lt_u32(s(self.sTmp), 32)
        p.s_cselect_b32(s(self.sTmp2), s(self.sTmp2), hex(OOB))
        p.v_and_b32(v(vh), 1, v(t))
        p.v_lshlrev_b32(v(vh), 4, v(vh))
        p.v_lshl_add_u32(v(vh), v(self.vG), 5, v(vh))
        p.v_add_u32(v(vh), s(self.sTmp2), v(vh))
        p.v_cndmask_b32(v(vh), v(vh), v(u), "vcc")
        S.put(sSh)

    def p6_ids(self, p):
        S = self.S
        self.sSrc, self.sT2, self.sU = S.get(), S.get(), S.get()
        p.s_and_b32(s(self.sSrc), s(self.sRG), -2)
        p.s_lshr_b32(s(self.sTmp), s(self.sW), 1)
        p.s_add_u32(s(self.sSrc), s(self.sSrc), s(self.sTmp))
        p.s_mul_i32(s(self.sSrc), s(self.sSrc), RGS)
        p.s_and_b32(s(self.sT2), s(self.sW), 1)
        p.s_lshl_b32(s(self.sT2), s(self.sT2), 1)
        p.s_lshr_b32(s(self.sU), s(self.sNB), 2)
        p.s_lshl_b32(s(self.sU), s(self.sU), 16)
        p.s_and_b32(s(self.sTmp), s(self.sNB), 3)
        p.s_lshl_b32(s(self.sTmp), s(self.sTmp), 12)
        p.s_add_u32(s(self.sU), s(self.sU), s(self.sTmp))
        p.s_add_u32(s(self.sU), s(self.sU), s(self.sSrc))

    def addr_U(self, p, dst, t, u):
        p.v_and_b32(v(t), 1, v(self.vG))
        p.v_add_u32(v(t), s(self.sT2), v(t))
        p.v_lshrrev_b32(v(u), 5, v(0))
        p.v_lshlrev_b32(v(dst), 14, v(t))
        p.v_lshl_add_u32(v(dst), v(u), 8, v(dst))
        p.v_lshl_add_u32(v(dst), v(self.vJ), 4, v(dst))

    def phase1(self):
        p, S, V, A, o = self.p, self.S, self.V, self.A, self.o
        t, u = V.get(), V.get()
        self.t, self.u = t, u
        vXd, vWd = [V.get(), V.get()], [V.get(), V.get()]
        for b in range(2):
            p.v_lshrrev_b32(v(t), 3, v(0))
            p.v_lshrrev_b32(v(u), 4, v(0))
            p.v_add_u32(v(u), 4 * b, v(u))
            p.v_and_b32(v(vXd[b]), 7, v(0))
            p.v_xor_b32(v(u), v(u), v(vXd[b]))
            p.v_lshlrev_b32(v(u), 4, v(u))
            p.v_add_u32(v(t), 7 * b, v(t))
            p.v_lshl_add_u32(v(vXd[b]), v(t), 10, v(u))
        vWq = V.get()
        self.w_dma_voff(p, vWq, 3072, "nat", col=self.sCB128)
        p.v_add_u32(v(vWd[0]), 1024, v(vWq))
        p.v_add_u32(v(vWd[1]), 32 * 3072 - 1024, v(vWq))
        sXo, sLx = S.get(), S.get()
        self.sLw = S.get()
        sP0, sP = S.get(), S.get()
        p.s_lshl_b32(s(sXo), s(self.sRG), 2)
        p.s_add_u32(s(sXo), s(sXo), s(self.sW))
        p.s_lshl_b32(s(sXo), s(sXo), 14)
        p.s_lshl_b32(s(sLx), s(self.sW), 11)
        p.s_lshl_b32(s(self.sLw), s(self.sW), 12)
        if o.get("rx"):
            p.s_add_u32(s(sP0), s(self.sRG), s(self.sCB))
            p.s_and_b32(s(sP0), s(sP0), o["rx"] & 3)
            if o["rx"] & 4:
                p.s_and_b32(s(sP), s(self.sRG), 4)
                p.s_or_b32(s(sP0), s(sP0), s(sP))
        elif o["rot"] & 8:
            p.s_lshl_b32(s(sP0), s(self.sRG), 1)
            if o["rot"] & 2:
                p.s_add_u32(s(sP0), s(sP0), s(self.sCB))
            if o["rot"] & 4:
                p.s_bfe_u32(s(sP), s(self.sRG), (1 << 16) | 2)
                p.s_add_u32(s(sP0), s(sP0), s(sP))
        else:
            p.s_mov_b32(s(sP0), 0)
        toks = [p.new_token() for _ in range(8)]
        tokQ = p.new_token()
        pieces, minstep = [], []

        def rotP(q, P):
            if o.get("rx"):
                q.s_xor_b32(s(sP), s(sP0), P)
                return
            q.s_add_u32(s(sP), s(sP0), P)
            q.s_and_b32(s(sP), s(sP), 7)
        for P in range(8):
            slot = P % 6
            ms = -1 if P < 6 else 2 * (P - 5) - 1

            def prex(q, P=P):
                rotP(q, P)
                q.s_lshl_b32(s(self.sDma), s(sP), 7)
                q.s_add_u32(s(self.sDma), s(self.sDma), s(sXo))

            def prew(q):
                q.s_mul_i32(s(self.sDma), s(sP), 2 * 32 * 3072)
            pieces.append(self.dma(vXd[0], self.sX, None, (sLx, P * 8192), token=toks[P], pre=prex))
            pieces.append(self.dma(vXd[1], self.sX, None, None, imm=1024, token=toks[P]))
            for pc in range(4):
                pieces.append(self.dma(vWd[pc // 2], self.sWQKV, None,
                                       (self.sLw, R1 + slot * 16384) if pc == 0 else None,
                                       imm=pc * 1024, token=toks[P], pre=prew if pc == 0 else None))
            minstep += [-1, -1, ms, ms, ms, ms]
        for j in range(8):
            def preq(q, j=j):
                rotP(q, j)
                q.s_mul_i32(s(self.sDma), s(sP), 2 * 32 * 3072)
            pieces.append(self.dma(vWq, self.sWQKV, None, (self.sLw, R1 + (2 + j // 2) * 16384 + (j % 2) * 2048),
                                   token=tokQ, pre=preq))
            pieces.append(self.dma(vWd[1], self.sWQKV, None, None, imm=1024, token=tokQ))
            minstep += [5 + 2 * (j // 2)] * 2
        p.wait(lgkm=0)
        self.stamp("start")
        n0 = o["n0"]
        for x in pieces[:6]:
            p.add(x)
        nxt = n0
        self.stamp("stage0 issued")
        if o.get("diag0"):
            p.wait_vm(toks[0])
            self.stamp("stage0 landed")
        pmain, p = p, p.sub()
        self.p = p
        tch = self.touch_setup()
        pois = A.get(4)
        self.aPois = pois
        for i in range(4):
            p.v_accvgpr_write_b32(r(pois + i), -1)
        self.sHeadOff = S.get()
        sKo = S.get()
        p.s_lshl_b32(s(self.sHeadOff), s(self.sCB), 2)
        p.s_add_u32(s(self.sHeadOff), s(self.sHeadOff), s(self.sW))
        p.s_lshl_b32(s(self.sHeadOff), s(self.sHeadOff), 11)
        p.s_add_u32(s(sKo), s(self.sHeadOff), s(self.sRGB))
        p.s_add_u32(s(sKo), s(sKo), K_OFF)
        vVst = V.get()
        p.v_and_b32(v(t), 1, v(self.vG))
        p.v_lshlrev_b32(v(t), 9, v(t))
        p.v_lshrrev_b32(v(u), 1, v(self.vG))
        p.v_lshl_add_u32(v(t), v(u), 8, v(t))
        p.v_lshl_add_u32(v(vVst), v(self.vJ), 4, v(t))
        p.v_add_u32(v(vVst), V_OFF - K_OFF, v(vVst))
        nearly = len(p.ins)
        vXr, vXo, vWr = [V.get(), V.get()], [V.get(), V.get()], [V.get(), V.get()]
        for sp in range(2):
            p.v_lshrrev_b32(v(t), 1, v(self.vJ))
            p.v_add_u32(v(u), 4 * sp, v(self.vG))
            p.v_xor_b32(v(t), v(t), v(u))
            p.v_lshlrev_b32(v(t), 4, v(t))
            p.v_lshl_add_u32(v(vXr[sp]), v(self.vJ), 7, v(t))
            p.v_add_u32(v(vXo[sp]), s(sLx), v(vXr[sp]))
        self.w_read_addr16(p, vWr[0], None, R1)
        p.v_add_u32(v(vWr[1]), 65536, v(vWr[0]))
        ones = V.get(4)
        self.vOnes = ones
        for i in range(4):
            p.v_mov_b32(v(ones + i), "0x3f803f80")
        self.VH = [[[V.get(4) for _ in range(2)] for _ in range(2)] for _ in range(4)]
        self.vCpat = V.get()
        p.v_and_b32(v(t), 11, v(self.vJ))
        p.v_cmp_eq_u32("vcc", 0, v(t))
        p.v_cndmask_b32(v(self.vCpat), 0, v(ones), "vcc")
        for d in range(4):
            for kt in range(2):
                for sp in range(2):
                    for i in range(4):
                        p.v_mov_b32(v(self.VH[d][kt][sp] + i), v(self.vCpat))
        self.BD, self.BE = V.get(16), V.get(16)
        p.v_and_b32(v(t), 31, v(0))
        p.v_lshrrev_b32(v(u), 5, v(0))
        p.v_lshlrev_b32(v(u), 2, v(u))
        p.v_sub_u32(v(t), v(t), v(u))
        p.v_mov_b32(v(u), f2u(NEG_BIG))
        cm = [S.get(2, 2) for _ in range(4)]
        for gg in range(4):
            for r_ in range(4):
                p.v_cmp_le_i32(s(cm[r_], 2), 8 * gg + r_, v(t))
            for r_ in range(4):
                p.v_cndmask_b32(v(self.BD + 4 * gg + r_), v(u), 0, s(cm[r_], 2))
                p.v_cndmask_b32(v(self.BE + 4 * gg + r_), 0, v(u), s(cm[r_], 2))
        for x in cm:
            S.put(x, 2)
        vO, vSt, vTm, vTh, vU = V.get(), V.get(), V.get(), V.get(), V.get()
        self.addr_O(p, vO, u)
        self.addr_stat(p, vSt)
        self.addr_T(p, vTm, vTh, t, u)
        self.p6_ids(p)
        self.addr_U(p, vU, t, u)
        for i, x in enumerate((vO, vSt, vTm, vTh, vU)):
            p.v_accvgpr_write_b32(r(self.aAddr + i), v(x))
        V.put(vU), V.put(vTm), V.put(vTh)
        vMs = vSt
        p.v_bfe_u32(v(t), v(0), 3, 1)
        p.v_and_b32(v(u), 7, v(0))
        p.v_lshlrev_b32(v(u), 4, v(u))
        p.s_lshl_b32(s(self.sTmp), s(self.sCB), 11)
        p.s_add_u32(s(self.sTmp), s(self.sTmp), TH_OFF)
        p.s_cmp_eq_u32(s(self.sW), 0)
        p.s_cselect_b32(s(self.sTmp), s(self.sTmp), hex(OOB))
        p.v_lshl_add_u32(v(vMs), v(t), 10, v(u))
        p.v_add_u32(v(vMs), s(self.sTmp), v(vMs))
        p.s_lshl_b32(s(self.sTmp), s(self.sW), 10)
        p.s_add_u32(s(self.sTmp), s(self.sTmp), s(self.sCB128))
        p.s_add_u32(s(self.sTmp), s(self.sTmp), STH_OFF)
        p.v_lshl_add_u32(v(u), v(t), 12, v(u))
        p.v_add_u32(v(u), s(self.sTmp), v(u))
        p.v_cndmask_b32(v(vMs), v(u), v(vMs), s(self.sHalfMask, 2))
        self.sTile, self.sStat, self.sO = S.get(), S.get(), S.get()
        p.s_lshl_b32(s(self.sTile), s(self.sW), 14)
        p.s_add_u32(s(self.sTile), s(self.sTile), s(self.sRGB))
        p.s_lshl_b32(s(self.sStat), s(self.sW), 10)
        p.s_add_u32(s(self.sStat), s(self.sStat), s(self.sRGB))
        p.s_lshr_b32(s(self.sO), s(self.sHeadOff), 2)
        p.s_add_u32(s(self.sO), s(self.sO), s(self.sRGB))
        self.sCB2K = S.get()
        p.s_lshl_b32(s(self.sCB2K), s(self.sCB), 11)
        self.sRdy = S.get()
        p.s_lshr_b32(s(self.sRdy), s(self.sHeadOff), 4)
        p.s_add_u32(s(self.sRdy), s(self.sRdy), RDY_OFF)
        p.s_getreg_b32(s(self.sWord), "hwreg(HW_REG_XCC_ID, 0, 4)")
        p.s_lshl_b32(s(self.sWord), s(self.sWord), 1)
        vR1 = V.get()
        p.v_and_b32(v(t), 3, v(0))
        p.v_add_u32(v(t), 1, v(t))
        p.v_min_u32(v(t), s(self.sRG), v(t))
        p.v_sub_u32(v(t), s(self.sRG), v(t))
        p.s_mov_b32(s(self.sTmp), RGS)
        p.v_mul_lo_u32(v(vR1), v(t), s(self.sTmp))

        su, p = p.ins, pmain
        self.p = p
        q = p.sub()
        self.publish_nonce(q)
        early = [q.ins]
        rest_p = list(pieces[6:n0])
        plan = str(o["plan"])
        for ch in plan:
            if ch == "6":
                early += rest_p[:6]
                rest_p = rest_p[6:]
            else:
                early += tch.pop(ch)
        early += rest_p
        p.add(su[:self.ntouch])
        k0 = max(nearly - self.ntouch, 0)
        body = su[self.ntouch:]
        p.add(interleave(atoms(body), early))

        self.arena = V.get(72)
        X = [[self.arena + 20 * b + 4 * i for i in range(5)] for b in range(2)]
        acc = [[self.arena + 40 + 16 * b + 4 * i for i in range(4)] for b in range(2)]
        Wf = [[V.get(4) for _ in range(2)] for _ in range(2)]
        cs = [V.get(4) for _ in range(2)]
        stS, stQ = V.get(4), V.get(4)
        vNon = V.get()

        def wofs(slot, piece):
            return slot // 4, (slot % 4) * 16384 + piece * 1024

        def reads(st):
            P, sp = st // 2, st % 2
            q = p.sub()
            bi = st % 2
            q.ds_read_b128(v(X[bi][0], 4), v(vXr[sp]), mods=f"offset:{P*8192}")
            for part in range(2):
                win, off = wofs(P % 6, sp * 2 + part)
                for h in range(2):
                    q.ds_read_b64_tr_b16(v(Wf[bi][part] + 2 * h, 2), v(vWr[win]), mods=f"offset:{off + h*512}")
            for tt in range(1, 4):
                q.ds_read_b128(v(X[bi][tt], 4), v(vXr[sp]), mods=f"offset:{P*8192 + tt*2048}")
            q.ds_read_b128(v(X[bi][4], 4), v(vXo[sp]), mods=f"offset:{P*8192}")
            return q.ins

        def mfmas(st):
            q = p.sub()
            bi = st % 2
            M = q.v_mfma_f32_16x16x32_bf16
            C = lambda rr: (v(rr, 4) if st else 0)
            for tt in range(4):
                M(v(acc[0][tt], 4), v(Wf[bi][0], 4), v(X[bi][tt], 4), C(acc[0][tt]))
                M(v(acc[1][tt], 4), v(X[bi][tt], 4), v(Wf[bi][1], 4), C(acc[1][tt]))
                if tt == 0:
                    M(v(cs[0], 4), v(Wf[bi][0], 4), v(ones, 4), C(cs[0]))
                    M(v(cs[1], 4), v(ones, 4), v(Wf[bi][1], 4), C(cs[1]))
            M(v(stS, 4), v(ones, 4), v(X[bi][4], 4), C(stS))
            M(v(stQ, 4), v(X[bi][4], 4), v(X[bi][4], 4), C(stQ))
            return q.ins

        def nonce_load(q):
            q.buffer_load_dword(v(vNon), "off", s(self.sDBG, 4), 0, mods="sc1")

        def rdy1_publish():
            q = p.sub()
            L, Rt, Gv = self.lab("nonce"), self.lab("nret"), self.lab("ngo")
            q.v_readfirstlane_b32(s(self.sNonce), v(vNon))
            q.s_cmp_eq_u32(s(self.sNonce), 0)
            q.s_cbranch_scc1(L)
            q.label(Rt)
            q.s_xor_b32(s(self.sWord), s(self.sWord), s(self.sNonce))
            c = p.sub()
            c.label(L)
            c.s_sub_u32(s(self.sSpin), s(self.sSpin), 1)
            c.s_cbranch_scc1(Gv)
            nonce_load(c)
            c.wait(vm=0)
            c.v_readfirstlane_b32(s(self.sNonce), v(vNon))
            c.s_cmp_eq_u32(s(self.sNonce), 0)
            c.s_cbranch_scc1(L)
            c.s_branch(Rt)
            c.label(Gv)
            self.giveup(c, 0x10)
            c.s_branch(Rt)
            self.cold.append(c.ins)
            return q.ins

        self.stamp("setup done")
        p.wait_vm(toks[0])
        self.stamp("own stage0")
        p.s_barrier()
        self.stamp("p1 first stage")
        ta = self.touch_w(self.sWO, 512 * KB) + self.touch_w(self.sW1, 512 * KB) + self.touch_w(self.sW2, 512 * KB)
        p.add(reads(0))
        for st in range(16):
            if o.get("stp1") and st % 2 == 0 and st:
                self.stamp("a%d" % st)
            mm = mfmas(st)
            pre = []
            if st % 2 == 1 and st < 15:
                P = (st + 1) // 2
                pre, mm = mm[:2], mm[2:]
                p.add(pre)
                p.wait(lgkm=0)
                assert nxt >= 6 * (P + 1)
                p.wait_vm(toks[P])
                p.s_barrier()
            fill = []
            k = 0
            quota = o["pr"] if nxt < 48 else int(o["qq"].lstrip("x")[st], 16)
            while k < quota and nxt < len(pieces) and minstep[nxt] <= st and (nxt != 48 or k == 0):
                fill.append(pieces[nxt])
                nxt += 1
                k += 1
            rd = reads(st + 1) if st < 15 else []
            mix = interleave(rd, fill) if rd else fill
            mix = [[x] if not isinstance(x, list) else x for x in self.regroup(rd, fill)]
            if st == o.get("nstep", 5):
                q = p.sub()
                nonce_load(q)
                mix.append(q.ins)
            if st == o.get("rstep", 10):
                mix.append(rdy1_publish())
            if st >= o["tstep"] and ta:
                mix.append(ta.pop(0))
            if st == o["gstep"]:
                mix += tch.pop("g", []) + tch.pop("f", [])
            p.add(interleave(mm, mix))
        p.add(flat(ta))
        self.stamp("p1a end")
        for x in vXo:
            V.put(x)
        V.put(vXd[0]), V.put(vXd[1]), V.put(vWd[0])
        for bi in range(2):
            V.put(Wf[bi][1], 4)
        m, var = V.get(2), V.get()
        p.v_and_b32(v(t), 3, v(0))
        p.v_cmp_eq_u32("vcc", 1, v(t))
        p.v_cndmask_b32(v(var), v(stQ), v(stQ + 1), "vcc")
        p.v_cmp_eq_u32("vcc", 2, v(t))
        p.v_cndmask_b32(v(var), v(var), v(stQ + 2), "vcc")
        p.v_cmp_eq_u32("vcc", 3, v(t))
        p.v_cndmask_b32(v(var), v(var), v(stQ + 3), "vcc")
        p.v_mul_f32(v(m + 1), f2u(1 / 512), v(stS))
        p.v_mul_f32(v(var), f2u(1 / 512), v(var))
        p.v_fma_f32(v(var), "-" + v(m + 1), v(m + 1), v(var))
        p.v_max_f32(v(var), 0, v(var))
        p.v_add_f32(v(var), f2u(EPS), v(var))
        p.v_rsq_f32(v(m), v(var))
        p.v_lshrrev_b32(v(t), 2, v(self.vJ))
        p.v_cmp_eq_u32("vcc", v(t), v(self.vG))
        p.v_mul_f32(v(m + 1), "-" + v(m + 1), v(m))
        p.s_lshr_b32(s(self.sTmp), s(sLx), 4)
        p.s_add_u32(s(self.sTmp), s(self.sTmp), R1)
        p.v_lshlrev_b32(v(t), 3, v(self.vJ))
        p.v_add_u32(v(u), s(self.sTmp), v(t))
        p.s_mov_b64("exec", "vcc")
        p.ds_write_b64(v(u), v(m, 2))
        p.s_mov_b64("exec", -1)
        S.put(sLx)
        V.put(m, 2), V.put(var), V.put(stS, 4), V.put(stQ, 4)
        p.v_add_u32(v(t), R1, v(t))
        p.v_lshlrev_b32(v(u), 5, v(self.vG))
        p.v_add_u32(v(u), R1, v(u))
        p.wait(lgkm=0)
        p.s_barrier()
        stA = [V.get(2) for _ in range(4)]
        stB = [X[0][0], X[0][2]]
        for tt in range(4):
            p.ds_read_b64(v(stA[tt], 2), v(t), mods=f"offset:{tt*128}")

        def rdB(tt):
            p.ds_read_b128(v(stB[tt % 2], 4), v(u), mods=f"offset:{tt*128}")
            p.ds_read_b128(v(stB[tt % 2] + 4, 4), v(u), mods=f"offset:{tt*128+16}")
        rdB(0), rdB(1)
        tmp = X[0][4]

        def affine_qk(q, c, ac, tt, dst):
            for i in (0, 2):
                q.v_pk_mul_f32(v(tmp + i, 2), v(c + i, 2), v(stA[tt], 2), mods="op_sel:[0,1] op_sel_hi:[1,1]")
            for i in (0, 2):
                q.v_pk_fma_f32(v(tmp + i, 2), v(ac + i, 2), v(stA[tt], 2), v(tmp + i, 2), mods="op_sel_hi:[1,0,1]")
            q.v_cvt_pk_bf16_f32(v(dst), v(tmp), v(tmp + 1))
            q.v_cvt_pk_bf16_f32(v(dst + 1), v(tmp + 2), v(tmp + 3))

        tokKV = p.new_token()
        self.vK = [V.get(4), V.get(4)]
        vF = [V.get(4), V.get(4)]
        for kt in range(2):
            affine_qk(p, cs[0], acc[0][2 * kt], 2 * kt, self.vK[kt])
            affine_qk(p, cs[0], acc[0][2 * kt + 1], 2 * kt + 1, self.vK[kt] + 2)
            p.v_permlane16_swap_b32(v(self.vK[kt]), v(self.vK[kt] + 2))
            p.v_permlane16_swap_b32(v(self.vK[kt] + 1), v(self.vK[kt] + 3))
            p.buffer_store_dwordx4(v(self.vK[kt], 4), v(self.vL16), s(self.sWS, 4), s(sKo),
                                   mods=f"offen offset:{kt*1024} sc1", token=tokKV)
        for kt in range(2):
            for half in range(2):
                tt = 2 * kt + half
                b = stB[half]
                for r_ in range(4):
                    p.v_mul_f32(v(tmp + r_), v(cs[1]), v(b + 2 * r_ + 1))
                for r_ in range(4):
                    p.v_fmac_f32(v(tmp + r_), v(acc[1][tt] + r_), v(b + 2 * r_))
                if kt == 0:
                    rdB(tt + 2)
                p.v_cvt_pk_bf16_f32(v(vF[kt] + 2 * half), v(tmp), v(tmp + 1))
                p.v_cvt_pk_bf16_f32(v(vF[kt] + 2 * half + 1), v(tmp + 2), v(tmp + 3))
            for i in range(2):
                p.v_permlane16_swap_b32(v(vF[kt] + i), v(vF[kt] + 2 + i))
            for i in range(2):
                p.v_permlane32_swap_b32(v(vF[kt] + i), v(vF[kt] + 2 + i))
            p.buffer_store_dwordx4(v(vF[kt], 4), v(vVst), s(self.sWS, 4), s(sKo), mods=f"offen offset:{kt*1024} sc1",
                                   token=tokKV)
        V.put(vVst)
        S.put(sKo)
        for part in range(2):
            V.put(cs[part], 4)
        for x in pieces[nxt:]:
            p.add(x)
        V.put(vWd[1]), V.put(vWq), S.put(sP0), S.put(sP)
        if o["pf"] == 2:
            p.v_mov_b32(v(self.vL128), v(self.vL1K))
        for x in self.touch_free[0]:
            V.put(x)
        self.vL1K = self.vL128
        for x in self.touch_free[1]:
            S.put(x)
        S.put(self.touch_free[2], 4)
        self.stamp("kv stored")
        self.KH = [[A.get(4) for _ in range(2)] for _ in range(4)]
        accQ, csQ = acc[0], X[1][4]

        def readsQ(st):
            P, sp = st // 2, st % 2
            q = p.sub()
            bi = st % 2
            win, off = wofs(2 + st // 4, st % 4)
            q.ds_read_b128(v(X[bi][0], 4), v(vXr[sp]), mods=f"offset:{P*8192}")
            for h in range(2):
                q.ds_read_b64_tr_b16(v(Wf[bi][0] + 2 * h, 2), v(vWr[win]), mods=f"offset:{off + h*512}")
            for tt in range(1, 4):
                q.ds_read_b128(v(X[bi][tt], 4), v(vXr[sp]), mods=f"offset:{P*8192 + tt*2048}")
            return q.ins

        def mfmasQ(st):
            q = p.sub()
            bi = st % 2
            C = lambda rr: (v(rr, 4) if st else 0)
            q.v_mfma_f32_16x16x32_bf16(v(accQ[0], 4), v(Wf[bi][0], 4), v(X[bi][0], 4), C(accQ[0]))
            q.v_mfma_f32_16x16x32_bf16(v(csQ, 4), v(Wf[bi][0], 4), v(ones, 4), C(csQ))
            for tt in range(1, 4):
                q.v_mfma_f32_16x16x32_bf16(v(accQ[tt], 4), v(Wf[bi][0], 4), v(X[bi][tt], 4), C(accQ[tt]))
            return q.ins

        def mk(fn):
            q = p.sub()
            fn(q)
            return q.ins
        tokP = p.new_token()
        self.tokP = tokP

        sA, sF = S.get(), S.get()
        p.s_add_u32(s(sA), s(self.sTile), s(self.sCB2K))
        p.s_lshl_b32(s(sF), s(self.sCB), 10)
        p.s_add_u32(s(sF), s(sF), s(self.sTile))
        self.tokO = p.new_token()

        def mark4(voff, sb, sc, imm, tok=tokP):
            def f(q):
                if sc:
                    q.s_add_u32(s(self.sTmp), s(sb), sc)
                q.buffer_store_dwordx4(r(pois, 4), v(voff), s(self.sWS, 4), s(self.sTmp if sc else sb),
                                       mods=f"offen offset:{imm} sc1", token=tok)
            return mk(f)

        def marksmall(q):
            q.s_mov_b32("exec_hi", 0)
            q.buffer_store_dwordx4(r(pois, 4), v(vMs), s(self.sWS, 4), s(self.sRGB), mods="offen sc1", token=tokP)
            q.s_mov_b32("exec_hi", -1)
        marks = [mark4(vO, self.sO, 0, 0, self.tokO), mark4(vO, self.sO, 32768, 0, self.tokO)]
        marks += [mark4(self.vL16, sA, H_OFF, 0), mark4(self.vL16, sA, H_OFF, 1024)]
        marks += [mk(marksmall), mark4(self.vL16, sA, T_OFF, 0), mark4(self.vL16, sA, T_OFF, 1024)]
        marks += [mark4(self.vL16, sA, X1_OFF, 0), mark4(self.vL16, sA, X1_OFF, 1024)]
        marks += [mark4(self.vL16, sF, F_OFF, 0)]

        if o.get("mks"):
            marks = [m_ if c_ == "1" else [] for m_, c_ in zip(marks, o["mks"].lstrip("x"))]

        def rdy1_pub(q):
            q.wait_vm(tokKV)
            q.s_add_u32(s(self.sTmp), s(self.sRdy), s(self.sRGB))
            self.line_store(q, self.sTmp)

        def rdy1_load(q):
            q.buffer_load_dword(v(vNon), v(vR1), s(self.sWS, 4), s(self.sRdy), mods="offen sc1")
        sB = [S.get() for _ in range(4)]
        self.sHalo = sB
        for d in range(4):
            p.s_sub_i32(s(sB[d]), s(self.sRG), d + 1)
            p.s_max_i32(s(sB[d]), s(sB[d]), 0)
            p.s_mul_i32(s(sB[d]), s(sB[d]), RGS)
            p.s_add_u32(s(sB[d]), s(sB[d]), s(self.sHeadOff))
            p.s_add_u32(s(sB[d]), s(sB[d]), K_OFF)
        self.vVld = V.get()
        p.v_lshrrev_b32(v(u), 5, v(0))
        p.v_lshlrev_b32(v(u), 8, v(u))
        p.v_lshl_add_u32(v(u), v(self.vJ), 4, v(u))
        p.v_add_u32(v(self.vVld), V_OFF - K_OFF, v(u))
        self.vV = [[vF[0], V.get(4)], [vF[1], V.get(4)]]
        for kt in range(2):
            for i in range(4):
                p.v_mov_b32(v(self.vV[kt][1] + i), v(self.vCpat))
        for tt in range(4):
            p.v_mul_f32(v(stA[tt]), f2u(0.25 * LOG2E), v(stA[tt]))
            p.v_mul_f32(v(stA[tt] + 1), f2u(0.25 * LOG2E), v(stA[tt] + 1))
        p.wait_vm(tokQ)
        p.s_barrier()
        self.stamp("p1b start")
        p.add(readsQ(0))
        for kt in range(2):
            for i in range(4):
                p.v_permlane16_swap_b32(v(vF[kt] + i), v(self.vV[kt][1] + i))
        V.put(self.vCpat)

        hstep = o["hstep"]
        halo = self.halo_loads(range(4))
        nm = 0
        nh = 0
        for st in range(16):
            fill = []
            if o.get("stp2") and st in (3, 4, 9, 14, 15):
                self.stamp("b%d" % st)
            if st == o["f1"]:
                fill.append(mk(rdy1_pub))
            if st == o["gb"]:
                fill.append(self.g2())
            if st == o["l1"]:
                fill.append(mk(rdy1_load))
            if st < hstep:
                tgt = min(o["mk1"], nm + int(o["mq"].lstrip("x")[st], 16))
                fill += marks[nm:tgt]
                nm = tgt
            else:
                if st == hstep:
                    fill.append(self.rdy_check([vNon], rdy1_load))
                tgt = min(len(halo), nh + o["hq"])
                fill += halo[nh:tgt]
                nh = tgt
            rd = readsQ(st + 1) if st < 15 else []
            p.add(interleave(mfmasQ(st), self.regroup(rd, fill)))
        p.wait(lgkm=0)
        p.s_barrier()
        self.stamp("p1b end")
        V.put(vR1), V.put(vNon)
        for x in vXr + vWr:
            V.put(x)
        for bi in range(2):
            V.put(Wf[bi][0], 4)
        self.aXres = A.get(8)
        rest = halo[nh:]
        self.marks = marks[nm:]
        q = p.sub()
        q.v_lshlrev_b32(v(t), 10, v(self.vJ))
        q.v_lshl_add_u32(v(t), v(self.vG), 5, v(t))
        q.s_add_u32(s(self.sTmp2), s(self.sCB128), s(sXo))
        q.buffer_load_dwordx4(r(self.aXres, 4), v(t), s(self.sX, 4), s(self.sTmp2), mods="offen")
        q.buffer_load_dwordx4(r(self.aXres + 4, 4), v(t), s(self.sX, 4), s(self.sTmp2), mods="offen offset:16")
        rest.append(q.ins)
        self.vQ = [V.get(4), V.get(4)]
        q = p.sub()
        for qt in range(2):
            affine_qk(q, csQ, accQ[2 * qt], 2 * qt, self.vQ[qt])
            affine_qk(q, csQ, accQ[2 * qt + 1], 2 * qt + 1, self.vQ[qt] + 2)
            q.v_permlane16_swap_b32(v(self.vQ[qt]), v(self.vQ[qt] + 2))
            q.v_permlane16_swap_b32(v(self.vQ[qt] + 1), v(self.vQ[qt] + 3))
        nq = min(len(rest), 2)
        p.add(interleave(q.ins, rest[:nq]))
        self.pending = rest[nq:]
        V.put(ones, 4)
        self.pending_free = ([vO, vMs], [sA, sF, sXo])
        for x in stA:
            V.put(x, 2)

    @staticmethod
    def regroup(rd, fill):
        out = []
        n, k = len(rd), 0
        if not n:
            return list(fill)
        for i, x in enumerate(rd):
            out.append([x])
            tgt = len(fill) * (i + 1) // n
            while k < tgt:
                out.append(fill[k])
                k += 1
        return out

    def halo_loads(self, ds):
        out = []
        for d in ds:
            for kt in range(2):
                q = self.p.sub()
                q.buffer_load_dwordx4(r(self.KH[d][kt], 4), v(self.vL16), s(self.sWS, 4), s(self.sHalo[d]),
                                      mods=f"offen offset:{kt*1024} sc1")
                out.append(q.ins)
            for kt in range(2):
                q = self.p.sub()
                q.s_mov_b64("exec", s(self.sHalfMask, 2))
                for sp in range(2):
                    q.buffer_load_dwordx4(v(self.VH[d][kt][sp], 4), v(self.vVld), s(self.sWS, 4), s(self.sHalo[d]),
                                          mods=f"offen offset:{kt*1024+sp*512} sc1")
                q.s_mov_b64("exec", -1)
                out.append(q.ins)
        return out

    def phase2(self):
        p, S, V, A, o = self.p, self.S, self.V, self.A, self.o
        M = lambda q, d, x, y, c: q.v_mfma_f32_32x32x16_bf16(d, x, y, c)
        t, u = self.t, self.u
        KH, VH, BD, BE = self.KH, self.VH, self.BD, self.BE
        Sb = [self.arena, self.arena + 16]
        O = [self.arena + 32, self.arena + 48]
        Pb = self.arena + 64
        self.O, self.Pb = O, Pb
        units = [(0, self.vK[0], BD, self.vV[0]), (1, self.vK[0], None, self.vV[0]), (1, self.vK[1], BD, self.vV[1])]
        gstart = {}
        for d in range(4):
            gstart[len(units)] = d
            lst = [(0, 0, 0), (0, 1, 0), (1, 0, 0), (1, 1, 0)] if d < 3 else [(0, 0, 1), (0, 1, 0), (1, 1, 1)]
            for qt, kt, e in lst:
                units.append((qt, KH[d][kt], BE if e else None, VH[d][kt]))
        n = len(units)
        vWd32, vWd16 = V.get(), V.get()
        self.vWd16 = vWd16
        q = p.sub()
        self.w_dma_voff(q, vWd32, 1024, "m32", col=self.sCB128)
        self.w_dma_voff(q, vWd16, 1024, "m16", col=self.sCB128)
        self.sG, self.sGrp = [S.get() for _ in range(4)], S.get()
        for g in range(4):
            if o["rot"] & 1:
                q.s_add_u32(s(self.sG[g]), s(self.sRG), g)
                q.s_and_b32(s(self.sG[g]), s(self.sG[g]), 3)
                q.s_lshl_b32(s(self.sG[g]), s(self.sG[g]), 14)
            else:
                q.s_mov_b32(s(self.sG[g]), g << 14)
        p.add(q.ins)
        self.tokWo, self.tokW1 = p.new_token(), p.new_token()
        bg = list(self.pending)
        npend = len(bg)
        wo = self.w_image(vWd32, self.sWO, 0, 1024, R0, self.tokWo)
        w1 = self.w_image(vWd16, self.sW1, 0, 1024, R1, self.tokW1)
        q = p.sub()
        q.wait_vm(self.tokO)
        vRa = V.get()
        q.v_mov_b32(v(u), s(self.sWord))
        q.s_lshl_b32(s(self.sTmp), s(self.sW), 2)
        q.s_add_u32(s(self.sTmp), s(self.sTmp), MISC + 1024)
        q.v_mov_b32(v(t), s(self.sTmp))
        q.ds_write_b32(v(t), v(u))
        q.v_and_b32(v(t), 3, v(0))
        q.v_lshlrev_b32(v(t), 2, v(t))
        q.v_add_u32(v(t), MISC + 1024, v(t))
        q.ds_read_b32(v(vRa), v(t))
        q.v_cmp_ne_u32("vcc", s(self.sWord), v(vRa))
        q.s_add_u32(s(self.sTmp), s(self.sRGB), s(self.sCB128))
        q.s_add_u32(s(self.sTmp), s(self.sTmp), RDY2_OFF)
        q.s_cmp_eq_u64("vcc", 0)
        q.s_cselect_b32(s(self.sTmp), s(self.sTmp), hex(OOB))
        self.line_store(q, self.sTmp)
        rdy2_pub = q.ins
        vRb = V.get()

        def rdy2_addr(z):
            z.s_bitcmp1_b32(s(self.sRG), 0)
            z.s_cselect_b32(s(self.sTmp), 1, -1)
            z.s_add_i32(s(self.sTmp), s(self.sTmp), s(self.sRG))
            z.s_max_i32(s(self.sTmp), s(self.sTmp), 0)
            z.s_min_i32(s(self.sTmp), s(self.sTmp), 31)
            z.s_and_b32(s(self.sTmp2), s(self.sRG), -2)
            z.v_bfe_u32(v(vRb), v(0), 3, 1)
            z.v_add_u32(v(vRb), s(self.sTmp2), v(vRb))
            z.v_mov_b32(v(t), s(self.sTmp))
            z.v_cndmask_b32(v(vRb), v(t), v(vRb), s(self.sHalfMask, 2))
            z.s_mov_b32(s(self.sTmp), RGS)
            z.v_mul_lo_u32(v(vRb), v(vRb), s(self.sTmp))
            z.v_and_b32(v(t), 7, v(0))
            z.v_lshl_add_u32(v(vRb), v(t), 7, v(vRb))
            z.v_add_u32(v(vRb), RDY2_OFF, v(vRb))

        def rdy2_load(z):
            z.buffer_load_dword(v(vRa), v(vRb), s(self.sWS, 4), 0, mods="offen sc1")
        q = p.sub()
        rdy2_addr(q)
        rdy2_load(q)
        t3 = self.touch_w(self.sW3, 1792 * KB)
        t4 = self.touch_w(self.sW4, 1792 * KB)
        self.t4 = t4
        ww = wo + w1
        bg += ww[:o["r2p"]] + [rdy2_pub] + ww[o["r2p"]:o["r2l"]] + [q.ins] + ww[o["r2l"]:]
        if o["gb"] < 0:
            bg.insert(npend + o["g2p"], self.g2())
        bg.insert(npend + o["t3a"], t3[0])
        bg.insert(npend + o["t3b"], t3[1])
        per = o.get("bgper", 3)
        marks = list(self.marks)
        pos = 0
        fresh = {0, 1}
        Ldone = self.lab("attn_done")

        def Sm(q, k):
            qt, K, C, _ = units[k]
            M(q, v(Sb[k % 2], 16), r(K, 4), v(self.vQ[qt], 4), v(C, 16) if C is not None else 0)

        def unit_body(k, sub=None):
            q = p.sub()
            qt, _, _, Vv = units[k]
            b = Sb[k % 2]

            def ex(i):
                if sub is not None:
                    q.v_sub_f32(v(b + i), v(b + i), v(sub[qt]))
                q.v_exp_f32(v(b + i), v(b + i))
            for i in range(8):
                ex(i)
            for i in range(4):
                q.v_cvt_pk_bf16_f32(v(Pb + i), v(b + 2 * i), v(b + 2 * i + 1))
            for i in range(8, 16):
                ex(i)
                if i == 9:
                    M(q, v(O[qt], 16), v(Vv[0], 4), v(Pb, 4), 0 if qt in fresh else v(O[qt], 16))
                    fresh.discard(qt)
            for i in range(4, 8):
                q.v_cvt_pk_bf16_f32(v(Pb + i), v(b + 2 * i), v(b + 2 * i + 1))
            M(q, v(O[qt], 16), v(Vv[1], 4), v(Pb + 4, 4), v(O[qt], 16))
            return q.ins

        Sm(p, 0)
        for k in range(n):
            if k + 1 < n:
                if k + 1 in gstart:
                    assert pos >= npend or gstart[k + 1] == 0
                    if gstart[k + 1] == 0:
                        while pos < npend:
                            p.add(bg[pos])
                            pos += 1
                        self.stamp("p2 stage A-")
                    if gstart[k + 1] > 0:
                        self.stamp("grp%d" % gstart[k + 1])
                Sm(p, k + 1)
            tgt = min(len(bg), pos + int(o["bq"].lstrip("x")[k], 16)) if k + 1 < n else len(bg)
            now = bg[pos:tgt]
            if k >= o["mu"]:
                km = o["mr"] if k + 1 < n else len(marks)
                now = marks[:km] + now
                marks = marks[km:]
            p.add(interleave(unit_body(k), now))
            pos = tgt
            if k + 1 in gstart:
                Lx = self.lab("attn_exit")
                p.s_cmp_le_u32(s(self.sRG), gstart[k + 1])
                p.s_cbranch_scc1(Lx)
                c = p.sub()
                c.label(Lx)
                c.add([copy.copy(x) for x in flat(marks + bg[pos:])])
                c.wait(vm=0)
                c.s_branch(Ldone)
                self.cold.append(c.ins)
        p.label(Ldone)
        self.stamp("p2 units")
        for x in self.pending_free[0]:
            V.put(x)
        for x in self.pending_free[1]:
            S.put(x)
        Lfb, Lnorm = self.lab("attn_truemax"), self.lab("attn_norm")
        lo, hi = struct.unpack("<I", struct.pack("<f", 2.0 ** -40))[0], struct.unpack("<I", struct.pack("<f", 2.0 ** 40))[0]
        p.v_subrev_u32(v(t), hex(lo), v(O[0] + 8))
        p.v_subrev_u32(v(u), hex(lo), v(O[1] + 8))
        p.v_max_u32(v(t), v(t), v(u))
        p.v_cmp_le_u32("vcc", hex(0 if o.get("forcefb") else hi - lo), v(t))
        p.s_cbranch_vccnz(Lfb)
        p.label(Lnorm)
        c = p.sub()
        c.label(Lfb)
        c.wait(vm=0)
        mx = [V.get(), V.get()]
        Lp2, Lfd = self.lab("fb_p2"), self.lab("fb_done")
        seen = set()
        for k in range(n):
            Sm(c, k)
            qt, b = units[k][0], Sb[k % 2]
            if qt not in seen:
                seen.add(qt)
                c.v_max_f32(v(mx[qt]), v(b), v(b + 1))
                rest = range(2, 16, 2)
            else:
                rest = range(0, 16, 2)
            for i in rest:
                c.v_max3_f32(v(mx[qt]), v(b + i), v(b + i + 1), v(mx[qt]))
            if k + 1 in gstart:
                c.s_cmp_le_u32(s(self.sRG), gstart[k + 1])
                c.s_cbranch_scc1(Lp2)
        c.label(Lp2)
        for qt in range(2):
            c.v_mov_b32(v(t), v(mx[qt]))
            c.v_permlane32_swap_b32(v(mx[qt]), v(t))
            c.v_max_f32(v(mx[qt]), v(mx[qt]), v(t))
        fresh = {0, 1}
        for k in range(n):
            Sm(c, k)
            c.add(unit_body(k, mx))
            if k + 1 in gstart:
                c.s_cmp_le_u32(s(self.sRG), gstart[k + 1])
                c.s_cbranch_scc1(Lfd)
        c.label(Lfd)
        c.s_nop(15)
        c.s_branch(Lnorm)
        self.cold.append(c.ins)
        V.put(mx[0]), V.put(mx[1])
        vO = V.get()
        self.vOst = vO
        p.v_rcp_f32(v(t), v(O[0] + 8))
        p.v_rcp_f32(v(u), v(O[1] + 8))
        p.v_accvgpr_read_b32(v(vO), r(self.aAddr + 0))
        for qt in range(2):
            for i in range(8):
                p.v_mul_f32(v(O[qt] + i), v(O[qt] + i), v((t, u)[qt]))
            for i in range(4):
                p.v_cvt_pk_bf16_f32(v(Pb + 4 * qt + i), v(O[qt] + 2 * i), v(O[qt] + 2 * i + 1))
        p.add(self.rdy_check([vRa], rdy2_load))
        p.v_cmp_ne_u32("vcc", s(self.sWord), v(vRa))
        p.v_accvgpr_write_b32(r(self.aAddr + 0), v(vRb))
        p.s_and_b64("vcc", "vcc", s(self.sHalfMask, 2))
        if o.get("forceslow"):
            p.s_branch("L_slow")
        else:
            p.s_cbranch_scc1("L_slow")
        for d in range(4):
            for kt in range(2):
                A.put(KH[d][kt], 4)
                for sp in range(2):
                    V.put(VH[d][kt][sp], 4)
        for x in [BD, BE] + Sb + O:
            V.put(x, 16)
        for x in self.vK + self.vQ + self.vV[0] + self.vV[1]:
            V.put(x, 4)
        for x in (vWd32, self.vVld, vRa, vRb):
            V.put(x)
        for x in self.sHalo + [self.sHeadOff, self.sRdy]:
            S.put(x)
        S.put(self.sG2[0], 4), S.put(self.sG2[1])
        A.put(self.aPois, 4)

    def colsum16(self, areg, dst_addr, dst_off, fr, c):
        rd, mm = [], []
        for st in range(16):
            for h in range(2):
                q = self.p.sub()
                q.ds_read_b64_tr_b16(r(fr[st] + 2 * h, 2), v(areg), mods=f"offset:{self.img(st) + h*512}")
                rd.append(q.ins)
            q = self.p.sub()
            q.v_mfma_f32_16x16x32_bf16(v(c, 4), r(fr[st], 4), v(self.vOnes, 4), v(c, 4) if st else 0)
            mm.append(q.ins)
        q = self.p.sub()
        q.s_mov_b64("exec", s(self.sQMask, 2))
        q.ds_write_b128(v(dst_addr), v(c, 4), mods=f"offset:{dst_off}")
        q.s_mov_b64("exec", -1)
        mm.append(q.ins)
        return rd, mm

    def w16_read(self, st, win):
        q = self.p.sub()
        R = self.o["npre"]
        for nt in range(4):
            for h in range(2):
                q.ds_read_b64_tr_b16(r(self.WB[st % R][nt] + 2 * h, 2), v(self.vWa[win][nt]),
                                     mods=f"offset:{self.img(st) + h*512}")
        return q.ins

    def paced(self, items, loads, delay, gap):
        out, k = [], 0
        for i, x in enumerate(items):
            if i >= delay and (i - delay) % gap == 0 and k < len(loads):
                out.append(loads[k])
                k += 1
            out.append(x)
        return out + loads[k:]

    def gemm64(self, win, off, voffs, acc, first_c, window, delay, late=None, tail=None, extra_loads=None, code=0,
               prebar=None):
        p, o = self.p, self.o
        R, LA = o["npre"], o["la"]
        act, sB = self.act, self.sAct
        for k in range(4):
            p.s_add_u32(s(sB[k]), s(self.sTile), off + 4096 * k)

        def ld(q, st):
            q.buffer_load_dwordx4(v(act + 4 * st, 4), v(voffs(st)), s(self.sWS, 4), s(sB[st // 4]),
                                  mods=f"offen offset:{(st%4)*1024} sc1")

        def ldi(st):
            q = p.sub()
            ld(q, st)
            return q.ins
        items = window([[x] for st in range(R) for x in self.w16_read(st, win)])
        nv = [i for i, x in enumerate(items) if any(y.cls == "vmem" for y in x)]
        delay = max([delay] + [i + 1 for i in nv])
        p.add(flat(self.paced(items, [ldi(st) for st in range(LA)], delay, o["gap"])))
        self.stamp("window")
        late = list(late or [])
        tail = list(tail or [])
        bar = 16 - R + 1
        fifo = list(range(LA))

        def chk(st):
            after = fifo[fifo.index(st + 1) + 1:]
            more = [k for k in after if k >= 0]
            return self.check3([act + 4 * st, act + 4 * st + 4],
                               lambda c: [ld(c, k) for k in [st, st + 1] + more],
                               len(more) if len(more) == len(after) else 0, code + st)
        p.add(flat(chk(0)))
        if o.get("stg"):
            self.stamp("c0")
        for st in range(16):
            if o.get("stg") and st in (4, 8, 12):
                self.stamp("s%d" % st)
            q = p.sub()
            for nt in range(4):
                c0 = (v(acc + 4 * nt, 4) if (st or first_c) else 0)
                q.v_mfma_f32_16x16x32_bf16(v(acc + 4 * nt, 4), r(self.WB[st % R][nt], 4), v(act + 4 * st, 4), c0)
            mm = q.ins
            slot = [[], [], [], []]
            if st + LA < 16:
                slot[0] += ldi(st + LA)
                fifo.append(st + LA)
            if st == max(16 - LA, 0) and extra_loads:
                slot[0] += flat(extra_loads)
                fifo.append(-1)
            if st == bar and tail:
                q = p.sub()
                q.wait(lgkm=0)
                if prebar is not None:
                    q.add(prebar)
                q.s_barrier()
                slot[0] = q.ins + slot[0]
            if st >= bar and tail and st + LA >= 16 + o["tl"]:
                slot[0 if st % 2 else 2] += tail.pop(0)
                fifo.append(-1)
            if st >= 16 - R and late:
                k = -(-len(late) // (16 - st))
                for i, x in enumerate(late[:k]):
                    assert not any(y.cls == "vmem" for y in x)
                    sl = i * 4 // k
                    if st % 2 and sl == 3 and st < 15:
                        sl = 2
                    slot[sl] += x
                late = late[k:]
            if st % 2 == 1 and st < 15:
                c3 = chk(st + 1)
                for i in range(3):
                    slot[1 + i] += c3[i]
            rd = self.w16_read(st + R, win) if st + R < 16 else []
            for nt in range(4):
                p.add(mm[nt])
                p.add(rd[2 * nt:2 * nt + 2])
                p.add(slot[nt])
        self.stamp("gemm")
        return tail

    def stats_partial(self, val, off, vSt):
        V = self.V
        p = self.p.sub()
        sm, sq = V.get(2), V.get(2)
        p.v_pk_add_f32(v(sm, 2), v(val, 2), v(val + 2, 2))
        p.v_pk_mul_f32(v(sq, 2), v(val, 2), v(val, 2))
        p.v_pk_fma_f32(v(sq, 2), v(val + 2, 2), v(val + 2, 2), v(sq, 2))
        for i in range(4, 16, 2):
            p.v_pk_add_f32(v(sm, 2), v(sm, 2), v(val + i, 2))
            p.v_pk_fma_f32(v(sq, 2), v(val + i, 2), v(val + i, 2), v(sq, 2))
        p.v_add_f32(v(sm), v(sm), v(sm + 1))
        p.v_add_f32(v(sq), v(sq), v(sq + 1))
        p.s_add_u32(s(self.sTmp2), s(self.sStat), s(self.sCB128))
        p.s_add_u32(s(self.sTmp2), s(self.sTmp2), off)
        p.v_permlane32_swap_b32(v(sm), v(sq))
        p.v_add_f32(v(sm), v(sm), v(sq))
        p.v_mov_b32(v(sq), v(sm))
        p.v_permlane16_swap_b32(v(sm), v(sq))
        p.v_add_f32(v(sm), v(sm), v(sq))
        p.buffer_store_dword(v(sm), v(vSt), s(self.sWS, 4), s(self.sTmp2), mods=self.st("offen"))
        V.put(sm, 2), V.put(sq, 2)
        return p.ins

    def cvt_store(self, src, pk, voff, soff):
        p = self.p
        for k in range(2):
            for i in range(4):
                p.v_cvt_pk_bf16_f32(v(pk + 4 * k + i), v(src + 8 * k + 2 * i), v(src + 8 * k + 2 * i + 1))
            p.buffer_store_dwordx4(v(pk + 4 * k, 4), v(voff), s(self.sWS, 4), s(soff),
                                   mods=self.st(f"offen offset:{k*1024}"))

    def gelu(self, x, n, cA, cB, cI, dst, tmp, packed=True):
        out = []
        for i in range(0, n, 2):
            t0 = tmp + (i % 4)
            g = self.p.sub()
            if packed:
                g.v_pk_mul_f32(v(t0, 2), v(x + i, 2), v(x + i, 2))
                g.v_pk_fma_f32(v(t0, 2), v(t0, 2), v(cB, 2), v(cA, 2), mods="op_sel_hi:[1,0,0]")
                g.v_pk_mul_f32(v(t0, 2), v(t0, 2), v(x + i, 2))
                g.v_exp_f32(v(t0), v(t0))
                g.v_exp_f32(v(t0 + 1), v(t0 + 1))
                g.v_pk_fma_f32(v(t0, 2), v(t0, 2), v(cI, 2), v(cI, 2), mods="op_sel_hi:[1,0,0]")
                g.v_rcp_f32(v(t0), v(t0))
                g.v_rcp_f32(v(t0 + 1), v(t0 + 1))
                g.v_pk_mul_f32(v(t0, 2), v(t0, 2), v(x + i, 2))
            else:
                for e in range(2):
                    g.v_mul_f32(v(t0 + e), v(x + i + e), v(x + i + e))
                for e in range(2):
                    g.v_fma_f32(v(t0 + e), v(t0 + e), v(cB), v(cA))
                for e in range(2):
                    g.v_mul_f32(v(t0 + e), v(t0 + e), v(x + i + e))
                for e in range(2):
                    g.v_exp_f32(v(t0 + e), v(t0 + e))
                for e in range(2):
                    g.v_fma_f32(v(t0 + e), v(t0 + e), v(cI), v(cI))
                for e in range(2):
                    g.v_rcp_f32(v(t0 + e), v(t0 + e))
                for e in range(2):
                    g.v_mul_f32(v(t0 + e), v(t0 + e), v(x + i + e))
            g.v_cvt_pk_bf16_f32(v(dst + i // 2), v(t0), v(t0 + 1))
            out.append(g.ins)
        res = []
        for k in range(0, len(out), 2):
            for x0, x1 in zip(out[k], out[k + 1]):
                res += [x0, x1]
        return res

    def gelu_consts(self, p, sc, cA, cB, cI):
        k1 = 2 * math.sqrt(2 / math.pi)
        p.v_mul_f32(v(cA), f2u(-k1 * LOG2E), v(sc))
        p.v_mul_f32(v(cB), v(sc), v(sc))
        p.v_rcp_f32(v(cI), v(sc))
        p.v_mul_f32(v(cB), v(cB), v(sc))
        p.v_mul_f32(v(cB), f2u(-k1 * 0.044715 * LOG2E), v(cB))

    def phase345(self):
        p, S, V, A, o = self.p, self.S, self.V, self.A, self.o
        t, u = self.t, self.u
        R = o["npre"]
        sub = p.sub
        p.wait_vm(self.tokP)
        p.buffer_store_dwordx4(v(self.Pb, 4), v(self.vOst), s(self.sWS, 4), s(self.sO), mods=self.st("offen"))
        p.s_add_u32(s(self.sTmp), s(self.sO), 32768)
        p.buffer_store_dwordx4(v(self.Pb + 4, 4), v(self.vOst), s(self.sWS, 4), s(self.sTmp), mods=self.st("offen"))
        self.stamp("o stored")
        V.put(self.vOst), S.put(self.sO)
        pk = self.Pb
        H = V.get(16)
        self.vOnes = V.get(4)
        self.tmp6 = V.get(4)
        self.c6 = V.get(2), V.get(2), V.get(2), V.get(2)
        self.wa6 = [[V.get(), V.get()], [V.get(), V.get()]]
        self.vd4 = [V.get() for _ in range(4)]
        self.vr4 = [V.get(low=True) for _ in range(3)]
        vCsW = V.get()
        self.WB = [[A.get(4) for _ in range(4)] for _ in range(R)]
        self.vWa = [[V.get() for _ in range(4)] for _ in range(2)]
        self.act = V.get(64)
        self.sAct = [S.get() for _ in range(4)]
        self.w_read_addr16(p, self.vWa[0][0], 0)
        for nt in range(4):
            if nt:
                p.v_xor_b32(v(self.vWa[0][nt]), nt << 5, v(self.vWa[0][0]))
            p.v_add_u32(v(self.vWa[1][nt]), 65536, v(self.vWa[0][nt]))
        p.wait_vm(self.tokW1)
        p.s_barrier()
        p.s_add_u32(s(self.sTmp), s(self.sRGB), s(self.sCB128))
        p.s_add_u32(s(self.sTmp), s(self.sTmp), RDY3_OFF)
        p.s_cmp_eq_u32(s(self.sW), 0)
        p.s_cselect_b32(s(self.sTmp), s(self.sTmp), hex(OOB))
        self.line_store(p, self.sTmp)
        vRa, vRb = V.get(), V.get()
        p.v_accvgpr_read_b32(v(vRb), r(self.aAddr + 0))

        def rdy3_load(z):
            z.buffer_load_dword(v(vRa), v(vRb), s(self.sWS, 4), 0, mods=f"offen offset:{RDY3_OFF - RDY2_OFF} sc1")
        q = sub()
        rdy3_load(q)
        r3l = q.ins
        self.vH = H
        xr, XR = V.get(8), V.get(16)
        vSt = V.get()
        vCsR = V.get()
        q = sub()
        for i in range(4):
            q.v_mov_b32(v(self.vOnes + i), "0x3f803f80")
        q.s_lshl_b32(s(self.sTmp), s(self.sW), 5)
        q.v_xor_b32(v(t), s(self.sTmp), v(self.vWa[1][0]))
        q.v_lshlrev_b32(v(vCsR), 4, v(self.vG))
        q.v_add_u32(v(vCsR), MISC, v(vCsR))
        q.s_lshl_b32(s(self.sTmp), s(self.sW), 6)
        q.v_add_u32(v(vCsW), s(self.sTmp), v(vCsR))
        csf, csc = [A.get(4) for _ in range(16)], V.get(4)
        crd, cmm = self.colsum16(t, vCsW, 0, csf, csc)
        w0 = [[x] for x in q.ins]
        tokW2 = p.new_token()
        w2 = self.w_image(self.vWd16, self.sW2, 0, 1024, R0, tokW2)
        sOut, sOutT = S.get(), S.get()
        q = sub()
        for i in range(8):
            q.v_accvgpr_read_b32(v(xr + i), r(self.aXres + i))
        q.v_accvgpr_read_b32(v(vSt), r(self.aAddr + 1))
        self.transpose4(q, xr)
        for nt in range(4):
            for i in range(2):
                q.v_lshlrev_b32(v(XR + 4 * nt + 2 * i), 16, v(xr + 2 * nt + i))
                q.v_and_b32(v(XR + 4 * nt + 2 * i + 1), "0xffff0000", v(xr + 2 * nt + i))
        q.s_add_u32(s(sOut), s(self.sTile), s(self.sCB2K))
        q.s_add_u32(s(sOut), s(sOut), H_OFF)
        vTm, vTh, vSl = V.get(), V.get(), V.get()
        self.vWd3 = V.get()
        q.v_accvgpr_read_b32(v(vTm), r(self.aAddr + 2))
        q.v_accvgpr_read_b32(v(vTh), r(self.aAddr + 3))
        q.v_lshlrev_b32(v(vSl), 8, v(self.vG))
        q.v_lshl_add_u32(v(vSl), v(self.vJ), 3, v(vSl))
        sSt = S.get()
        q.s_add_u32(s(sSt), s(self.sStat), STH_OFF)
        q.s_add_u32(s(sOutT), s(self.sRGB), s(self.sCB2K))
        q.s_add_u32(s(sOutT), s(sOutT), T_OFF)
        rest = self.gemm64(0, O_OFF, lambda st: self.vL16, H, False,
                           lambda pre: w0 + crd + pre[:8] + self.regroup2(pre[8:], cmm),
                           o["d3"], late=atoms(q.ins), tail=w2, code=0x200, extra_loads=[r3l])
        for x in csf:
            A.put(x, 4)
        V.put(csc, 4)
        V.put(xr, 8)
        A.put(self.aXres, 8)
        for i in range(0, 16, 2):
            p.v_pk_add_f32(v(H + i, 2), v(H + i, 2), v(XR + i, 2))
        V.put(XR, 16)
        self.cvt_store(H, pk, self.vL16, sOut)
        p.add(interleave(self.stats_partial(H, STH_OFF, vSt), rest[:2]))
        rest = rest[2:]
        self.stamp("p3 stored")
        acc, cs = V.get(16), V.get(16)
        stt = V.get(4)
        q = sub()
        sW3o = S.get()
        q.s_lshl_b32(s(sW3o), s(self.sNB), 8)
        q.s_cmp_lt_u32(s(self.sNB), 14)
        q.s_cselect_b32(s(sW3o), s(sW3o), hex(OOB))
        self.w_dma_voff(q, self.vWd3, 3584, "m16", swz32=True, col=sW3o)
        w0 = atoms(q.ins)

        def ldstat(z):
            z.buffer_load_dwordx2(v(stt, 2), v(vSl), s(self.sWS, 4), s(sSt), mods="offen sc1")
            z.buffer_load_dwordx2(v(stt + 2, 2), v(vSl), s(self.sWS, 4), s(sSt), mods="offen offset:128 sc1")
        q = sub()
        ldstat(q)
        extra = [q.ins]
        mean, rstd = V.get(2), V.get(2)
        cA, cB, cI = V.get(2), V.get(2), V.get(2)
        q = sub()
        q.v_pk_add_f32(v(stt, 2), v(stt, 2), v(stt + 2, 2))
        q.v_permlane32_swap_b32(v(stt), v(stt + 1))
        q.v_add_f32(v(stt), v(stt), v(stt + 1))
        q.v_mov_b32(v(stt + 1), v(stt))
        q.v_permlane16_swap_b32(v(stt), v(stt + 1))
        q.v_add_f32(v(stt), v(stt), v(stt + 1))
        q.v_mov_b32(v(stt + 1), v(stt))
        q.v_permlane32_swap_b32(v(stt), v(stt + 1))
        q.v_mul_f32(v(mean), f2u(-1 / 512), v(stt))
        q.v_mul_f32(v(t), f2u(1 / 512), v(stt + 1))
        q.v_fma_f32(v(t), "-" + v(mean), v(mean), v(t))
        q.v_max_f32(v(t), 0, v(t))
        q.v_add_f32(v(u), f2u(EPS), v(t))
        q.v_rsq_f32(v(rstd), v(u))
        q.v_mov_b32(v(u), f2u(EPS))
        q.v_mul_f32(v(t), v(t), v(rstd))
        q.v_fmac_f32(v(u), v(t), v(rstd))
        q.v_rsq_f32(v(u), v(u))
        q.v_mul_f32(v(u), v(u), v(rstd))
        self.gelu_consts(q, u, cA, cB, cI)
        statq = q.ins
        statc = self.check([stt, stt + 1, stt + 2, stt + 3], ldstat, code=0x380)
        self.tokW3a, self.tokW3b = p.new_token(), p.new_token()
        w3a = self.w_image(self.vWd3, self.sW3, 0, 3584, R1, self.tokW3a)
        vo = [V.get() for _ in range(4)]
        t2, u2 = V.get(), V.get()
        late = []
        for nt in range(4):
            q = sub()
            q.ds_read_b128(v(cs + 4 * nt, 4), v(vCsR), mods=f"offset:{nt*64}")
            late.append(q.ins)
        q = sub()
        q.v_lshlrev_b32(v(u2), 5, v(self.vG))
        q.v_and_b32(v(t2), 1, v(self.vJ))
        q.v_lshl_add_u32(v(u2), v(t2), 4, v(u2))
        late += atoms(q.ins)
        for gam in range(4):
            mag = 1 + gam // 2
            up = gam % 2 == 0
            q = sub()
            q.s_mov_b32(s(self.sTmp), TH_OFF - T_OFF - (0 if up else 3 * 16384))
            q.s_cmp_eq_u32(s(self.sRG), 0 if up else 31)
            q.s_cselect_b32(s(self.sTmp), hex(OOB), s(self.sTmp))
            q.v_add_u32(v(t2), s(self.sTmp), v(u2))
            late.append(q.ins)
            q = sub()
            q.s_cmp_eq_u32(s(self.sW), 0 if up else 3)
            if up:
                q.s_cselect_b32(s(self.sTmp), mag, 0)
                q.v_cmp_gt_u32(s(self.sM, 2), s(self.sTmp), v(self.vJ))
            else:
                q.s_cselect_b32(s(self.sTmp), 16 - mag, 16)
                q.v_cmp_le_u32(s(self.sM, 2), s(self.sTmp), v(self.vJ))
            late.append(q.ins)
            q = sub()
            q.v_cndmask_b32(v(vo[gam]), v(self.vL16), v(t2), s(self.sM, 2))
            late.append(q.ins)
        q = sub()
        q.wait_vm(tokW2)
        rest = self.gemm64(1, H_OFF, lambda st: self.vL16, acc, False,
                           lambda pre: self.regroup2(w0 + pre[:24], rest) + pre[24:], o["d4"], late=late, tail=w3a,
                           extra_loads=extra + [[copy.copy(x) for x in self.t4[0]]], code=0x300, prebar=q.ins)
        V.put(t2), V.put(u2), S.put(sW3o)
        p.add(self.rdy_check([vRa], rdy3_load))
        V.put(vRa), V.put(vRb)
        p.add(statc)
        p.add(interleave(statq, rest[:1]))
        rest = rest[1:]
        V.put(stt, 4), V.put(vSl), S.put(sSt)
        for i in range(0, 16, 2):
            p.v_pk_fma_f32(v(acc + i, 2), v(cs + i, 2), v(mean, 2), v(acc + i, 2), mods="op_sel_hi:[1,0,1]")
        tmp = V.get(4)
        g = self.gelu(acc, 16, cA, cB, cI, pk, tmp)
        for k in range(2):
            p.add(interleave(g[40 * k:40 * k + 40], rest[:3]))
            rest = rest[3:]
            p.buffer_store_dwordx4(v(pk + 4 * k, 4), v(vTh), s(self.sWS, 4), s(self.sCB2K), mods=f"offen offset:{k*1024} sc1")
            p.buffer_store_dwordx4(v(pk + 4 * k, 4), v(vTm), s(self.sWS, 4), s(sOutT), mods=self.st(f"offen offset:{k*1024}"))
        self.stamp("p4 stored")
        V.put(tmp, 4), V.put(cs, 16), V.put(acc, 16), V.put(vTm), V.put(vTh), S.put(sOutT)
        for x in (cA, cB, cI):
            V.put(x, 2)
        Y = V.get(16)
        q = sub()
        for i in range(0, 16, 2):
            q.v_pk_add_f32(v(Y + i, 2), v(H + i, 2), v(mean, 2), mods="op_sel_hi:[1,0]")
        for i in range(0, 16, 2):
            q.v_pk_mul_f32(v(Y + i, 2), v(Y + i, 2), v(rstd, 2), mods="op_sel_hi:[1,0]")
        q.s_add_u32(s(sOut), s(self.sTile), s(self.sCB2K))
        q.s_add_u32(s(sOut), s(sOut), X1_OFF)
        w0 = [[x] for x in q.ins]
        q = sub()
        q.wait_vm(self.tokW3a)
        w3b = self.w_image(self.vWd3, self.sW3, 128, 3584, R0, self.tokW3b)
        self.vCsW = vCsW
        late = self.p6_setup()
        rest = self.gemm64(0, T_OFF, lambda st: vo[st // 4], Y, True,
                           lambda pre: self.regroup2(w0 + pre[:8], rest) + pre[8:], o["d5"], late=late, tail=w3b,
                           extra_loads=[[copy.copy(x) for x in self.t4[1]]], code=0x400, prebar=q.ins)
        V.put(self.vL128), S.put(self.sPf), S.put(self.sGW)
        V.put(mean, 2), V.put(rstd, 2)
        for x in vo:
            V.put(x)
        self.cvt_store(Y, pk, self.vL16, sOut)
        p.add(interleave(self.stats_partial(Y, STX_OFF, vSt), rest[:2]))
        self.pending = rest[2:]
        self.stamp("p5 stored")
        q = sub()
        for i in range(0, 16, 2):
            q.v_pk_add_f32(v(H + i, 2), v(H + i, 2), v(Y + i, 2))
        p.add(interleave(q.ins, self.pending))
        V.put(Y, 16), V.put(pk, 8), V.put(vSt), V.put(vCsR)
        V.put(self.act, 64)
        S.put(sOut)
        for x in self.WB:
            for y in x:
                A.put(y, 4)
        for x in self.vWa[1] + self.vWa[0][1:]:
            V.put(x)
        V.put(self.vWd16)
        V.put(self.vWd3)
        for x in self.sG + [self.sGrp]:
            S.put(x)

    def w4_setup(self, q):
        S, V, A = self.S, self.V, self.A
        self.kseq = [(0, 0), (1, 0), (2, 0), (0, 1), (1, 1), (2, 1), (3, 0), (0, 2), (1, 2), (2, 2), (3, 2),
                     (0, 3), (1, 3), (2, 3)]
        for qp in range(2):
            self.w_dma_voff(q, self.vd4[qp], 1024, "m32", qconst=qp)
        q.v_add_u32(v(self.vd4[2]), 16 * 1024 - 2048, v(self.vd4[0]))
        q.v_add_u32(v(self.vd4[3]), 16 * 1024 - 3072, v(self.vd4[1]))
        q.v_subrev_u32(v(self.vd4[1]), 1024, v(self.vd4[1]))
        self.sStage = S.get()
        self.sW4o = [S.get() for _ in range(4)]
        for m in range(3):
            a_ = self.sW4o[m]
            if self.o["rot"] & 1:
                q.s_and_b32(s(a_), s(self.sRG), 3)
                q.s_mul_i32(s(a_), s(a_), 3)
                q.s_add_u32(s(a_), s(a_), s(self.sW))
                q.s_add_u32(s(a_), s(a_), 4 * m)
                q.s_cmp_ge_u32(s(a_), 12)
                q.s_cselect_b32(s(self.sTmp), 12, 0)
                q.s_sub_u32(s(a_), s(a_), s(self.sTmp))
            else:
                q.s_add_u32(s(a_), s(self.sW), 4 * m)
            q.s_lshl_b32(s(a_), s(a_), 17)
            q.s_add_u32(s(a_), s(a_), s(self.sCB128))
        a_ = self.sW4o[3]
        q.s_lshr_b32(s(a_), s(self.sW), 1)
        q.s_lshl_b32(s(a_), s(a_), 2)
        q.s_and_b32(s(self.sTmp), s(self.sW), 1)
        q.s_add_u32(s(a_), s(a_), s(self.sTmp))
        q.s_add_u32(s(a_), s(a_), 48)
        q.s_lshl_b32(s(a_), s(a_), 15)
        q.s_add_u32(s(a_), s(a_), s(self.sCB128))
        q.s_lshl_b32(s(self.sStage), s(self.sW), 14)
        q.s_add_u32(s(self.sStage), s(self.sStage), R1)
        self.vr4 = [self.vWa[0][0]] + self.vr4
        q.v_lshlrev_b32(v(self.t), 12, v(self.vG))
        q.v_sub_u32(v(self.t), v(self.vWa[0][0]), v(self.t))
        q.v_lshl_add_u32(v(self.t), v(self.vG), 10, v(self.t))
        q.v_add_u32(v(self.vr4[0]), s(self.sStage), v(self.t))
        for nt in range(1, 4):
            q.v_xor_b32(v(self.vr4[nt]), nt << 5, v(self.vr4[0]))
        self.tok4 = [self.p.new_token() for _ in range(14)]

    def w4_dma(self, l):
        m, i = self.kseq[l]
        sb, c = self.sW4o[m], i * 32768
        return [self.dma(self.vd4[qq], self.sW4, (sb, c) if qq == 0 else None,
                         (self.sStage, (l % 4) * 4096) if qq == 0 else None, imm=qq * 1024, token=self.tok4[l])
                for qq in range(4)]

    def w4_read(self, l):
        out = []
        for nt in range(4):
            for h in range(2):
                q = self.p.sub()
                if nt == 0 and h == 0:
                    q.wait_vm(self.tok4[l])
                q.ds_read_b64_tr_b16(r(self.W4[l][nt] + 2 * h, 2), v(self.vr4[nt]),
                                     mods=f"offset:{(l%4)*4096 + h*512}", token=self.tok4[l])
                out.append(q.ins)
        return out

    def w4_stream(self):
        out = []
        for l in range(3):
            out += self.w4_dma(l)
        for l in range(14):
            if l + 3 < 14:
                d = self.w4_dma(l + 3)
                if l >= 1:
                    q = self.p.sub()
                    q.wait_ds(self.tok4[l - 1])
                    d[0] = q.ins + d[0]
                out += d
            rd = self.w4_read(l)
            out += [rd[0] + rd[1], rd[2] + rd[3], rd[4] + rd[5], rd[6] + rd[7]]
        return out

    def p6_setup(self):
        p, S, V = self.p, self.S, self.V
        t, u = self.t, self.u
        mean, cA, cB, cI = self.c6
        vt, vs, vcs, cb_ = mean + 1, cA + 1, cB + 1, cI + 1
        wa = self.wa6
        self.ca6 = self.tmp6
        q = p.sub()
        q.v_and_b32(v(t), 1, v(self.vG))
        q.v_add_u32(v(t), s(self.sT2), v(t))
        q.v_lshrrev_b32(v(u), 5, v(0))
        q.v_lshlrev_b32(v(vt), 14, v(t))
        q.v_lshl_add_u32(v(vt), v(u), 8, v(vt))
        q.v_lshl_add_u32(v(vt), v(self.vJ), 4, v(vt))
        q.v_lshlrev_b32(v(vs), 10, v(t))
        q.v_lshl_add_u32(v(vs), v(u), 9, v(vs))
        q.v_lshl_add_u32(v(vs), v(self.vJ), 3, v(vs))
        q.v_lshlrev_b32(v(vcs), 4, v(u))
        q.v_add_u32(v(vcs), MISC + 256, v(vcs))
        q.v_bfe_u32(v(t), v(0), 2, 2)
        q.v_and_b32(v(u), 1, v(self.vG))
        q.v_and_b32(v(wa[1][0]), 2, v(t))
        q.v_xor_b32(v(u), v(u), v(wa[1][0]))
        q.v_lshlrev_b32(v(u), 5, v(u))
        q.v_lshl_add_u32(v(u), v(t), 7, v(u))
        q.v_lshrrev_b32(v(t), 5, v(0))
        q.v_lshl_add_u32(v(u), v(t), 12, v(u))
        q.v_and_b32(v(t), 3, v(0))
        q.v_lshl_add_u32(v(wa[1][0]), v(t), 3, v(u))
        q.v_xor_b32(v(wa[1][1]), 64, v(wa[1][0]))
        for m in range(2):
            q.v_add_u32(v(wa[0][m]), 65536, v(wa[1][m]))
        self.w_read_addr16(q, cb_, None, 0, swz32=True)
        q.v_add_u32(v(self.ca6), 65536, v(cb_))
        self.w4_setup(q)
        self.sFl, self.sFlo = S.get(), S.get()
        q.s_and_b32(s(self.sFl), s(self.sRG), -2)
        q.s_mul_i32(s(self.sFl), s(self.sFl), RGS)
        q.s_add_u32(s(self.sFl), s(self.sFl), UFL_OFF)
        q.s_lshl_b32(s(self.sFlo), s(self.sNB), 2)
        q.s_add_u32(s(self.sFlo), s(self.sFlo), s(self.sW))
        q.s_lshl_b32(s(self.sFlo), s(self.sFlo), 2)
        q.s_add_u32(s(self.sFlo), s(self.sFlo), s(self.sFl))
        return atoms(q.ins)

    def u_flag_addr(self, q, vFl, t):
        q.v_bfe_u32(v(t), v(0), 1, 2)
        q.v_mov_b32(v(vFl), s(self.sW4o[0]))
        for m in range(1, 4):
            q.v_cmp_eq_u32("vcc", m, v(t))
            q.v_mov_b32(v(self.vTmp), s(self.sW4o[m]))
            q.v_cndmask_b32(v(vFl), v(vFl), v(self.vTmp), "vcc")
        q.v_lshrrev_b32(v(vFl), 17, v(vFl))
        q.v_and_b32(v(t), 1, v(0))
        q.v_lshl_add_u32(v(vFl), v(vFl), 2, v(t))
        q.s_and_b32(s(self.sTmp), s(self.sRG), 1)
        q.s_lshl_b32(s(self.sTmp), s(self.sTmp), 1)
        q.v_add_u32(v(vFl), s(self.sTmp), v(vFl))
        q.v_lshlrev_b32(v(vFl), 2, v(vFl))

    def u_flag_load(self, q, k):
        q.buffer_load_dword(v(self.vFa), v(self.vFl), s(self.sWS, 4), s(self.sFl), mods=f"offen offset:{256*k} sc1")

    def u_flag_pub(self, q, k, tok):
        q.wait_vm(tok)
        q.v_mov_b32(v(self.vTmp), s(self.sWord))
        q.s_mov_b64("exec", 1)
        q.buffer_store_dword(v(self.vTmp), "off", s(self.sWS, 4), s(self.sFlo), mods=self.st(f"offset:{256*k}"))
        q.s_mov_b64("exec", -1)

    def phase6(self):
        p, S, V, A, o = self.p, self.S, self.V, self.A, self.o
        t, u = self.t, self.u
        sub = p.sub
        Lidle, Ljoin = self.lab("p6idle"), self.lab("p6join")
        X1 = V.get(128)
        acc = [V.get(16) for _ in range(4)]
        stt, tmp = V.get(8), self.tmp6
        mean, cA, cB, cI = self.c6
        vt, vs, vcs, cb_ = mean + 1, cA + 1, cB + 1, cI + 1
        wa = self.wa6
        self.W4 = [[A.get(4) for _ in range(4)] for _ in range(14)]
        p.s_cmp_ge_u32(s(self.sNB), 14)
        p.s_cbranch_scc1(Lidle)
        c = sub()
        c.label(Lidle)
        c.wait(vm=0, lgkm=0)
        c.s_barrier()
        c.add(flat(self.w4_stream()))
        self.vFl, self.vFa = X1 + 126, X1 + 127
        self.u_flag_addr(c, self.vFl, self.vFa)
        self.u_flag_load(c, 0)
        c.wait(vm=0, lgkm=0)
        c.s_branch(Ljoin)
        self.cold.append(c.ins)
        sB = self.sAct
        for k in range(4):
            p.s_add_u32(s(sB[k]), s(self.sSrc), X1_OFF + 4096 * k)
        NB = o.get("nb6", 6)
        Wr = [A.get(4) for _ in range(NB)]
        seq = [(i, ks) for ks in range(32) for i in range(2)] + [(2, ks) for ks in range(32)] + \
              [(3, ks) for ks in range(32)]

        def wread(z, n):
            i, ks = seq[n]
            for h in range(2):
                z.ds_read_b64_tr_b16(r(Wr[n % NB] + 2 * h, 2), v(wa[i // 2][i % 2]),
                                     mods=f"offset:{self.img(ks//2) + (ks%2)*8192 + h*512}")
        q = sub()
        for n in range(NB - 1):
            wread(q, n)
        csf = [x for l in range(10, 14) for x in self.W4[l]]
        crd, cmm = self.colsum16(self.ca6, self.vCsW, 256, csf, acc[3])
        window = crd + [[x] for x in q.ins] + cmm

        def ld(z, ks):
            z.buffer_load_dwordx4(v(X1 + 4 * ks, 4), v(vt), s(self.sWS, 4), s(sB[ks // 8]),
                                  mods=f"offen offset:{(ks%8)*512} sc1")

        def ldi(ks):
            z = sub()
            ld(z, ks)
            return z.ins
        LA = o["la6"]
        p.add(flat(self.paced(window, [ldi(k) for k in range(LA)], o["d6"], o["gap6"])))
        self.stamp("p6 window")
        sSt = S.get()

        def ldstat(z):
            z.s_add_u32(s(sSt), s(self.sSrc), STX_OFF)
            for k in range(4):
                z.buffer_load_dwordx2(v(stt + 2 * k, 2), v(vs), s(self.sWS, 4), s(sSt), mods=f"offen offset:{k*128} sc1")

        def mm(n):
            z = sub()
            i, ks = seq[n]
            if n + NB - 1 < len(seq):
                wread(z, n + NB - 1)
            z.v_mfma_f32_32x32x16_bf16(v(acc[i], 16), r(Wr[n % NB], 4), v(X1 + 4 * ks, 4), v(acc[i], 16) if ks else 0)
            return z.ins
        fifo = list(range(LA))

        def chk(ks):
            after = fifo[fifo.index(ks + 1) + 1:]
            more = [k for k in after if k >= 0]
            return self.check3([X1 + 4 * ks, X1 + 4 * ks + 4], lambda c: [ld(c, k) for k in [ks, ks + 1] + more],
                               len(more) if len(more) == len(after) else 0, 0x500 + ks)
        p.add(flat(chk(0)))
        if o.get("stg"):
            self.stamp("c0")
        c3 = None
        for ks in range(32):
            if o.get("stg") and ks in (8, 16, 24):
                self.stamp("s%d" % ks)
            if ks == 32 - (NB + 1) // 2:
                p.wait_vm(self.tokW3b)
                p.s_barrier()
            p.add(mm(2 * ks))
            if ks + LA < 32:
                p.add(ldi(ks + LA))
                fifo.append(ks + LA)
            if ks + LA == 32:
                ldstat(p)
                fifo.append(-1)
            if ks % 2 == 1 and ks < 31:
                c3 = chk(ks + 1)
                p.add(c3[0] + c3[1])
            p.add(mm(2 * ks + 1))
            if ks % 2 == 1 and ks < 31:
                p.add(c3[2])
        self.stamp("p6 pass1")
        p.wait(lgkm=0)
        p.s_barrier()
        q = sub()
        q.add(self.check([stt + i for i in range(8)], ldstat, code=0x580))
        q.v_add_f32(v(stt), v(stt), v(stt + 2))
        q.v_add_f32(v(stt + 1), v(stt + 1), v(stt + 3))
        q.v_add_f32(v(stt + 4), v(stt + 4), v(stt + 6))
        q.v_add_f32(v(stt + 5), v(stt + 5), v(stt + 7))
        q.v_add_f32(v(stt), v(stt), v(stt + 4))
        q.v_add_f32(v(stt + 1), v(stt + 1), v(stt + 5))
        q.v_mov_b32(v(stt + 2), v(stt))
        q.v_mov_b32(v(stt + 3), v(stt + 1))
        q.v_permlane32_swap_b32(v(stt), v(stt + 2))
        q.v_permlane32_swap_b32(v(stt + 1), v(stt + 3))
        q.v_add_f32(v(stt), v(stt), v(stt + 2))
        q.v_add_f32(v(stt + 1), v(stt + 1), v(stt + 3))
        q.v_mul_f32(v(mean), f2u(-1 / 512), v(stt))
        q.v_mul_f32(v(t), f2u(1 / 512), v(stt + 1))
        q.v_fma_f32(v(t), "-" + v(mean), v(mean), v(t))
        q.v_max_f32(v(t), 0, v(t))
        q.v_add_f32(v(t), f2u(EPS), v(t))
        q.v_rsq_f32(v(t), v(t))
        self.gelu_consts(q, t, cA, cB, cI)
        vst = vs
        q.v_accvgpr_read_b32(v(vst), r(self.aAddr + 4))
        nchk = [k for k, x in enumerate(q.ins) if x.cls == "label"][0] + 1
        statq = [q.ins[:nchk]] + [[x] for x in q.ins[nchk:]]
        cs = stt

        def epi(i, packed):
            z = sub()
            for half in range(2):
                for gg in range(2):
                    z.ds_read_b128(v(cs + 4 * gg, 4), v(vcs), mods=f"offset:{i*128 + (2*half+gg)*32}")
                a0 = acc[i] + 8 * half
                if packed:
                    for k in range(0, 8, 2):
                        z.v_pk_fma_f32(v(a0 + k, 2), v(cs + k, 2), v(mean, 2), v(a0 + k, 2), mods="op_sel_hi:[1,0,1]")
                else:
                    for k in range(8):
                        z.v_fmac_f32(v(a0 + k), v(cs + k), v(mean))
                z.add(self.gelu(a0, 8, cA, cB, cI, a0, tmp, packed))
                z.buffer_store_dwordx4(v(a0, 4), v(vst), s(self.sWS, 4), s(self.sU),
                                       mods=self.st(f"offen offset:{i*1024 + half*512}"), token=self.tokU[max(i - 1, 0)])
            return [[x] for x in z.ins]
        self.tokU = [p.new_token() for _ in range(3)]
        w4 = self.w4_stream()
        crd, cmm = self.colsum16(cb_, self.vCsW, 512, csf, acc[3])
        csB = crd[:16] + self.regroup2(crd[16:], cmm[:8]) + cmm[8:]
        n1, n2 = o.get("w4n1", 28), o.get("w4n2", 32)
        f2 = self.regroup2(statq + epi(0, False) + csB, w4[:n1])
        p.add(interleave([mm(n) for n in range(64, 96)], f2))
        f3 = self.regroup2(epi(1, False), w4[n1:n1 + n2])
        p.add(interleave([mm(n) for n in range(96, 128)], f3))
        self.stamp("p6 gemm")
        p.wait(lgkm=0)
        p.s_barrier()
        tail = self.regroup2(epi(2, True) + epi(3, True), w4[n1 + n2:])
        q = sub()
        self.u_flag_load(q, 0)
        tail.insert(len(tail) - o["fal"], q.ins)
        q = sub()
        self.u_flag_pub(q, 1, self.tokU[1])
        tail.insert(len(tail) // 2 + o["fbp"], q.ins)
        q = sub()
        self.u_flag_pub(q, 0, self.tokU[0])
        tail.insert(o["fap"], q.ins)
        q = sub()
        self.u_flag_addr(q, self.vFl, self.vFa)
        p.add(q.ins)
        p.add(flat(tail))
        p.label(Ljoin)
        self.stamp("p6 stored")
        for x in wa[0] + wa[1] + [self.vCsW] + self.vd4 + self.vr4:
            V.put(x)
        V.put(tmp, 4), V.put(stt, 8), V.put(self.vOnes, 4)
        for x in Wr:
            A.put(x, 4)
        for x in acc:
            V.put(x, 16)
        for x in (mean, cA, cB, cI):
            V.put(x, 2)
        V.put(X1, 126)
        S.put(sSt)

    @staticmethod
    def regroup2(main, fill):
        out = []
        n, k = len(main), 0
        for i, x in enumerate(main):
            out.append(x)
            tgt = len(fill) * (i + 1) // n
            while k < tgt:
                out.append(fill[k])
                k += 1
        return out

    def phase7(self):
        p, S, V, A, o = self.p, self.S, self.V, self.A, self.o
        t, u = self.t, self.u
        sub = p.sub
        LA = o["la7"]
        NB = LA + 1
        U = [V.get(4) for _ in range(NB)]
        acc = [V.get(16) for _ in range(3)] + [self.vH]
        vU = [V.get() for _ in range(4)]
        sT = self.sAct
        vRw = V.get()
        for m in range(4):
            p.s_lshr_b32(s(self.sTmp), s(self.sW4o[m]), 19)
            p.s_lshl_b32(s(self.sTmp), s(self.sTmp), 16)
            p.s_bfe_u32(s(self.sTmp2), s(self.sW4o[m]), (4 << 16) | 15)
            p.s_lshl_b32(s(self.sTmp2), s(self.sTmp2), 10)
            p.s_add_u32(s(self.sTmp), s(self.sTmp), s(self.sTmp2))
            p.v_add_u32(v(vU[m]), s(self.sTmp), v(self.vL16))
        sLd = [S.get() for _ in range(3)]
        for i in range(4):
            p.s_add_u32(s(self.sTmp), s(self.sW), i + 1)
            p.s_and_b32(s(self.sTmp), s(self.sTmp), 3)
            p.s_lshl_b32(s(self.sTmp), s(self.sTmp), 14)
            if i < 3:
                p.s_mov_b32(s(sLd[i]), s(self.sTmp))
            p.s_add_u32(s(sT[i]), s(self.sTmp), s(self.sRGB))
        p.add(self.rdy_check([self.vFa], lambda c: self.u_flag_load(c, 0)))

        ne = o["p7e"]
        order = [(i, l) for lo, hi in ((0, 7), (7, 10), (10, 14)) for i in range(4) for l in range(lo, hi)]

        def ld(z, n):
            i, l = order[n]
            m, b = self.kseq[l]
            z.buffer_load_dwordx4(v(U[n % NB], 4), v(vU[m]), s(self.sWS, 4), s(sT[i]), mods=f"offen offset:{b*1024} sc1")
        for n in range(LA):
            ld(p, n)
        self.stamp("p7 window")
        red = []

        for n in range(56):
            i, l = order[n]
            if n in (7, 14, 21, 28, 36, 44, 50) and o.get("st7"):
                self.stamp("p7.%d" % n)
            q = sub()
            for nt in range(4):
                q.v_mfma_f32_16x16x32_bf16(v(acc[i] + 4 * nt, 4), r(self.W4[l][nt], 4), v(U[n % NB], 4),
                                           v(acc[i] + 4 * nt, 4) if (l or i == 3) else 0)
            slot = [[], [], [], []]
            if n + LA in (28, 40):
                slot[0] += self.rdy_check([self.vFa], lambda c, k=1 + (n + LA) // 40: self.u_flag_load(c, k))
            if n + LA < 56:
                z = sub()
                ld(z, n + LA)
                slot[0] += z.ins
            if n == o["fcp"]:
                z = sub()
                self.u_flag_pub(z, 2, self.tokU[2])
                slot[2] += z.ins
            if n + LA + o["fld"] in (28, 40):
                z = sub()
                self.u_flag_load(z, 1 + (n + LA + o["fld"]) // 40)
                slot[2] += z.ins
            if l == 10 and i > 0:
                z = sub()
                z.v_add_u32(v(vRw), s(sLd[i - 1]), v(self.vL16))
                red = [z.ins]
                for nt in range(4):
                    z = sub()
                    z.ds_write_b128(v(vRw), v(acc[i - 1] + 4 * nt, 4), mods=f"offset:{(i-1)*4096 + nt*1024}")
                    red.append(z.ins)
            for k in (2, 3):
                if red and (k == 3 or l > 11):
                    slot[k] += red.pop(0)
            for nt in range(4):
                p.add(q.ins[nt])
                p.add(slot[nt])
        self.stamp("p7 gemm")
        p.s_lshl_b32(s(self.sTmp), s(self.sW), 14)
        p.v_add_u32(v(vRw), s(self.sTmp), v(self.vL16))
        p.wait(lgkm=0)
        p.s_barrier()
        for sw in range(3):
            for nt in range(4):
                p.ds_read_b128(v(acc[sw] + 4 * nt, 4), v(vRw), mods=f"offset:{sw*4096 + nt*1024}")
        H = self.vH
        p.v_lshlrev_b32(v(t), 10, v(self.vJ))
        p.v_lshl_add_u32(v(t), v(self.vG), 5, v(t))
        p.s_lshl_b32(s(self.sTmp), s(self.sRG), 2)
        p.s_add_u32(s(self.sTmp), s(self.sTmp), s(self.sW))
        p.s_lshl_b32(s(self.sTmp), s(self.sTmp), 14)
        p.s_add_u32(s(self.sTmp), s(self.sTmp), s(self.sCB128))
        for sw in range(3):
            for i in range(0, 16, 2):
                p.v_pk_add_f32(v(H + i, 2), v(H + i, 2), v(acc[sw] + i, 2))
        pk = V.get(8)
        for i in range(8):
            p.v_cvt_pk_bf16_f32(v(pk + i), v(H + 2 * i), v(H + 2 * i + 1))
        self.transpose4(p, pk)
        p.buffer_store_dwordx4(v(pk, 4), v(t), s(self.sOUT, 4), s(self.sTmp), mods="offen")
        p.buffer_store_dwordx4(v(pk + 4, 4), v(t), s(self.sOUT, 4), s(self.sTmp), mods="offen offset:16")
        self.stamp("end")
        if self.o.get("stamps"):
            p.s_lshl_b32(s(self.sTmp), s(2), 2)
            p.s_add_u32(s(self.sTmp), s(self.sTmp), s(self.sW))
            p.s_lshl_b32(s(self.sTmp), s(self.sTmp), 8)
            p.s_add_u32(s(self.sTmp), s(self.sTmp), WS_BYTES)
            p.s_memrealtime(s(self.sT0, 2))
            p.wait(lgkm=0)
            p.v_writelane_b32(v(self.vStamp), s(self.sT0), 63)
            p.v_writelane_b32(v(self.vStamp), s(self.sSpin), 61)
            p.v_writelane_b32(v(self.vStamp), int(self.fast), 60)
            p.v_lshlrev_b32(v(t), 2, v(0))
            p.buffer_store_dword(v(self.vStamp), v(t), s(self.sWS, 4), s(self.sTmp), mods="offen")

    def build(self):
        p, S = self.p, self.S
        self.prologue()
        self.sHalfMask, self.sQMask, self.sM = S.get(2, 2), S.get(2, 2), S.get(2, 2)
        p.s_mov_b32(s(self.sHalfMask), "0x0000ffff")
        p.s_mov_b32(s(self.sHalfMask + 1), "0x0000ffff")
        p.s_mov_b32(s(self.sQMask), "0x00010001")
        p.s_mov_b32(s(self.sQMask + 1), "0x00010001")
        self.phase1()
        self.phase2()
        keep = {k: copy.deepcopy(getattr(self, k)) for k in ("V", "A", "S")}
        ns = self.nstamp
        for fast in (True, False):
            self.fast = fast
            if not fast:
                for k, x in keep.items():
                    setattr(self, k, x)
                self.nstamp = ns
                p.label("L_slow")
            self.phase345()
            self.phase6()
            self.phase7()
            if fast:
                p.label("L_end")
                self.low = (self.V.low, self.A.low, self.S.low)
            p.s_endpgm()
            for c in self.cold:
                p.add(c)
            self.cold = []
        body = p.finalize()
        hdr = open("cdna_kernels/" + NAME + ".s.ref").read().split("; Override launch")[0]
        return f"""{hdr}; @launch grid=(256,1,1) block=(256,1,1) lds=163840
.amdgcn_target "amdgcn-amd-amdhsa--gfx950"
.text
.globl {NAME}_kernel
.p2align 8
.type {NAME}_kernel,@function
{NAME}_kernel:
{body}
.section .rodata,"a"
.p2align 6
.amdhsa_kernel {NAME}_kernel
  .amdhsa_next_free_vgpr 512
  .amdhsa_next_free_sgpr 102
  .amdhsa_accum_offset 256
  .amdhsa_group_segment_fixed_size 0
  .amdhsa_kernarg_size 88
  .amdhsa_user_sgpr_count 2
  .amdhsa_user_sgpr_kernarg_segment_ptr 1
  .amdhsa_system_sgpr_workgroup_id_x 1
  .amdhsa_float_denorm_mode_32 3
.end_amdhsa_kernel
"""


if __name__ == "__main__":
    opts = {}
    out = None
    for x in sys.argv[1:]:
        if x.startswith("-o"):
            out = x[2:]
        else:
            k, _, val = x.partition("=")
            opts[k] = (int(val) if val.lstrip('-').isdigit() else val) if val else 1
    g = Gen(opts)
    text = g.build()
    open(out or "cdna_kernels/" + NAME + ".s", "w").write(text)
    if opts.get("stamps"):
        open((out or NAME) + ".stamps", "w").write("\n".join(g.stamp_names))
    print("min free V/A/S", g.low, "bytes", len(text), file=sys.stderr)
```

```python
import re

TRANS = ("v_exp_f32", "v_log_f32", "v_rcp_f32", "v_rsq_f32", "v_sqrt_f32", "v_sin_f32", "v_cos_f32",
         "v_rcp_iflag_f32")


def v(i, n=1):
    return f"v{i}" if n == 1 else f"v[{i}:{i+n-1}]"


def a(i, n=1):
    return f"a{i}" if n == 1 else f"a[{i}:{i+n-1}]"


def s(i, n=1):
    return f"s{i}" if n == 1 else f"s[{i}:{i+n-1}]"


def r(reg, n=1):
    return a(reg - 256, n) if reg >= 256 else v(reg, n)


_RE = re.compile(r"^(-|abs\(|\|)?([vas])(?:(\d+)|\[(\d+):(\d+)\])\)?\|?$")


def regs_of(opnd):
    o = opnd.strip()
    if o in ("vcc", "exec"):
        return {(o, 0), (o, 1)}
    if o in ("vcc_lo", "exec_lo"):
        return {(o[:-3], 0)}
    if o in ("vcc_hi", "exec_hi"):
        return {(o[:-3], 1)}
    if o == "m0":
        return {("m0", 0)}
    m = _RE.match(o)
    if not m:
        return set()
    k = m.group(2)
    if m.group(3) is not None:
        lo = hi = int(m.group(3))
    else:
        lo, hi = int(m.group(4)), int(m.group(5))
    if k == "a":
        return {("v", 256 + i) for i in range(lo, hi + 1)}
    return {(k, i) for i in range(lo, hi + 1)}


class Ins:
    __slots__ = ("op", "ops", "mods", "cls", "rd", "wr", "token", "comment", "passes", "srcc", "srcab",
                 "raw", "label", "target", "waits")

    def __init__(self, op, ops=(), mods="", token=None, comment=None):
        self.op = op
        self.ops = [str(o) for o in ops]
        self.mods = mods
        self.token = token
        self.comment = comment
        self.passes = 0
        self.srcc = set()
        self.srcab = set()
        self.raw = None
        self.label = None
        self.target = None
        self.waits = None
        self._classify()

    def text(self):
        if self.raw is not None:
            return self.raw
        t = "  " + self.op
        if self.ops:
            t += " " + ", ".join(self.ops)
        if self.mods:
            t += " " + self.mods
        if self.comment:
            t += "   ; " + self.comment
        return t

    def _classify(self):
        op, ops = self.op, self.ops
        R = lambda idxs: set().union(*[regs_of(ops[i]) for i in idxs]) if idxs else set()
        n = len(ops)
        self.rd, self.wr = set(), set()
        if op.startswith("v_mfma"):
            self.cls = "mfma"
            self.wr = R([0])
            self.srcab = R([1, 2])
            self.srcc = R([3])
            self.rd = self.srcab | self.srcc
            if "32x32x16" in op:
                self.passes = 8
            elif "16x16x32" in op:
                self.passes = 4
            else:
                raise ValueError(op)
        elif op.startswith("v_"):
            self.cls = "valu"
            if op.startswith("v_cmp"):
                self.wr = R([0])
                self.rd = R(range(1, n))
                if op.startswith("v_cmpx"):
                    self.wr |= regs_of("exec")
            elif op.startswith("v_permlane16_swap") or op.startswith("v_permlane32_swap"):
                self.wr = R([0, 1])
                self.rd = R([0, 1])
            elif op.startswith(("v_add_co", "v_sub_co", "v_addc_co", "v_subb_co")):
                self.wr = R([0, 1])
                self.rd = R(range(2, n))
            elif op == "v_nop":
                pass
            else:
                self.wr = R([0])
                self.rd = R(range(1, n))
                if op.startswith(("v_fmac", "v_dot2c", "v_pk_fmac", "v_writelane")) or "dpp" in op or \
                        "row_" in self.mods or "quad_perm" in self.mods:
                    self.rd |= R([0])
                if op.startswith("v_cndmask") and n == 3:
                    self.rd |= regs_of("vcc")
        elif op.startswith("ds_"):
            self.cls = "ds"
            if op.startswith(("ds_read", "ds_bpermute", "ds_permute", "ds_swizzle")):
                self.wr = R([0])
                self.rd = R(range(1, n))
            else:
                self.rd = R(range(n))
        elif op.startswith(("buffer_", "global_")):
            self.cls = "vmem"
            lds = " lds" in " " + self.mods or op.startswith("global_load_lds")
            if op.startswith("buffer_load"):
                if lds:
                    self.rd = R(range(n)) | {("m0", 0)}
                else:
                    self.wr = R([0])
                    self.rd = R(range(1, n))
            elif op.startswith("global_load"):
                if lds:
                    self.rd = R(range(n)) | {("m0", 0)}
                else:
                    self.wr = R([0])
                    self.rd = R(range(1, n))
            elif "atomic" in op:
                self.rd = R(range(n))
                if "sc0" in self.mods:
                    self.wr = R([0])
            else:
                self.rd = R(range(n))
        elif op.startswith("s_"):
            self.cls = "salu"
            if op in ("s_waitcnt", "s_nop", "s_barrier", "s_endpgm", "s_sleep", "s_setprio", "s_branch") or \
                    op.startswith("s_cbranch"):
                self.cls = "ctl"
                if op.startswith("s_cbranch") or op == "s_branch":
                    self.target = ops[0]
            elif op.startswith(("s_load", "s_memtime", "s_memrealtime", "s_buffer_load")):
                self.cls = "smem"
                self.wr = R([0])
                self.rd = R(range(1, n))
            elif op.startswith("s_cmp") or op.startswith("s_bitcmp"):
                self.rd = R(range(n))
            elif op.startswith("s_getreg") or op.startswith("s_getpc"):
                self.wr = R([0])
            else:
                self.wr = R([0])
                self.rd = R(range(1, n))
                if "saveexec" in op:
                    self.wr |= regs_of("exec")
                    self.rd |= regs_of("exec")
                if op.startswith(("s_addk", "s_mulk")):
                    self.rd |= R([0])
        else:
            self.cls = "other"


class Prog:
    def __init__(self):
        self.ins = []
        self._tok = 0

    def emit(self, op, *ops, mods="", token=None, c=None):
        i = Ins(op, ops, mods, token, c)
        self.ins.append(i)
        return i

    def __getattr__(self, name):
        if name.startswith(("v_", "s_", "ds_", "buffer_", "global_")):
            return lambda *ops, **kw: self.emit(name, *ops, **kw)
        raise AttributeError(name)

    def add(self, items):
        if isinstance(items, Ins):
            self.ins.append(items)
        else:
            self.ins.extend(items)

    def label(self, name):
        i = Ins("label")
        i.cls = "label"
        i.label = name
        i.raw = name + ":"
        self.ins.append(i)
        return i

    def raw(self, text):
        i = Ins("raw")
        i.cls = "raw"
        i.raw = text
        self.ins.append(i)
        return i

    def comment(self, text):
        return self.raw("  ; " + text)

    def new_token(self):
        self._tok += 1
        return self._tok

    def wait_vm(self, token):
        i = Ins("waittok")
        i.cls = "waittok"
        i.waits = ("vm", token)
        self.ins.append(i)
        return i

    def wait_ds(self, token):
        i = Ins("waittok")
        i.cls = "waittok"
        i.waits = ("ds", token)
        self.ins.append(i)
        return i

    def wait(self, vm=None, lgkm=None):
        parts = []
        if vm is not None:
            parts.append(f"vmcnt({vm})")
        if lgkm is not None:
            parts.append(f"lgkmcnt({lgkm})")
        i = Ins("s_waitcnt", [" ".join(parts)])
        i.waits = ("explicit", vm, lgkm)
        self.ins.append(i)
        return i

    def sub(self):
        p = Prog()
        p._tok = None
        p.new_token = self.new_token
        return p

    def finalize(self, cluster=0, hoist=0):
        if cluster:
            self.ins = cluster_mem(self.ins, cluster)
        self.ins = insert_waits(self.ins)
        if hoist:
            self.ins = hoist_waits(self.ins, hoist)
        self.ins = insert_nops(self.ins)
        return "\n".join(i.text() for i in self.ins) + "\n"


def mk_wait(vm, lgkm):
    parts = []
    if vm is not None:
        parts.append(f"vmcnt({vm})")
    if lgkm is not None:
        parts.append(f"lgkmcnt({lgkm})")
    i = Ins("s_waitcnt", [" ".join(parts)])
    i.waits = ("explicit", vm, lgkm)
    return i


def insert_waits(ins):
    out = []
    vm, ds = [], []
    smem = set()
    snap = {}
    seen_labels = set()
    dead = False
    for i in ins:
        if i.cls == "label":
            seen_labels.add(i.label)
            if dead:
                dead = False
                if i.label in snap:
                    svm, sds, ssm, _, _ = snap[i.label].pop(0)
                    vm, ds, smem = list(svm), list(sds), set(ssm)
                else:
                    vm, ds, smem = [], [], set()
            if i.label in snap:
                for (svm, sds, ssm, nvm, nds) in snap.pop(i.label):
                    newvm = [e for e in vm if not any(e is x for x in svm)]
                    newds = [e for e in ds if not any(e is x for x in sds)]
                    if newvm:
                        vm = [(e[0], e[1], True) for e in svm] + [(e[0], e[1], True) for e in newvm]
                    elif len(svm) > len(vm):
                        vm = list(svm)
                    if newds:
                        ds = [(e[0], e[1], True) for e in sds] + [(e[0], e[1], True) for e in newds]
                    elif len(sds) > len(ds):
                        ds = list(sds)
                    smem |= ssm
            out.append(i)
            continue
        if i.cls in ("raw",):
            out.append(i)
            continue
        need_vm = need_ds = None
        if i.cls == "waittok":
            kind, tok = i.waits
            q = vm if kind == "vm" else ds
            idx = [k for k, e in enumerate(q) if e[1] == tok]
            if idx:
                n = len(q) - 1 - idx[-1]
                if any(e[2] for e in q):
                    n = 0
                if kind == "vm":
                    need_vm = n
                else:
                    need_ds = n
        else:
            touched = i.rd | i.wr
            for k, e in enumerate(vm):
                if e[0] & touched:
                    need_vm = len(vm) - 1 - k
            if need_vm is not None and any(e[2] for e in vm):
                need_vm = 0
            for k, e in enumerate(ds):
                if e[0] & touched:
                    need_ds = len(ds) - 1 - k
            if need_ds is not None and any(e[2] for e in ds):
                need_ds = 0
            if smem & touched:
                need_ds = 0
        if need_ds is not None and smem:
            need_ds = 0
        if need_vm is not None and need_vm > 62:
            need_vm = 62
        if need_ds is not None and need_ds > 14:
            need_ds = 14
        if need_vm is not None or need_ds is not None:
            out.append(mk_wait(need_vm, need_ds))
            if need_vm is not None:
                vm = vm[len(vm) - need_vm:] if need_vm else []
            if need_ds is not None:
                ds = ds[len(ds) - need_ds:] if need_ds else []
                if need_ds == 0:
                    smem = set()
        if i.cls == "waittok":
            continue
        if i.op == "s_waitcnt":
            _, wvm, wl = i.waits
            if wvm is not None and len(vm) > wvm:
                vm = vm[len(vm) - wvm:] if wvm else []
            if wl is not None:
                if wl == 0:
                    ds = []
                    smem = set()
                elif not smem and len(ds) > wl:
                    ds = ds[len(ds) - wl:]
        elif i.cls == "vmem":
            vm.append((set(i.wr), i.token, False))
        elif i.cls == "ds":
            ds.append((set(i.wr), i.token, False))
        elif i.cls == "smem":
            smem |= i.wr
        if i.target is not None and i.target not in seen_labels:
            snap.setdefault(i.target, []).append((list(vm), list(ds), set(smem), len(vm), len(ds)))
        if i.op in ("s_branch", "s_endpgm"):
            dead = True
        out.append(i)
    return out


def _states(i):
    if i.cls in ("label", "raw"):
        return 0
    if i.op == "s_nop":
        return int(i.ops[0]) + 1
    return 1


def _need(p, c):
    n = 0
    vw = {x for x in p.wr if x[0] == "v"}
    if p.cls == "valu":
        sw = {x for x in p.wr if x[0] in ("s", "vcc")}
        if c.cls == "mfma" and vw & c.rd:
            n = max(n, 2)
        if c.cls == "valu":
            if c.op.startswith("v_permlane") and vw & c.rd:
                n = max(n, 2)
            if c.op.startswith(("v_readlane", "v_readfirstlane")) and vw & c.rd:
                n = max(n, 1)
            if ("dpp" in c.op or "row_" in c.mods or "quad_perm" in c.mods) and vw & c.rd:
                n = max(n, 2)
            if p.op.startswith(TRANS) and (vw & c.rd):
                n = max(n, 1)
            if sw & c.rd:
                n = max(n, 4 if c.op.startswith(("v_readlane", "v_writelane")) else 2)
            if p.op.startswith("v_dot2") and (vw & (c.rd | c.wr)):
                n = max(n, 3)
            if ("op_sel" in p.mods and not p.op.startswith("v_pk_")) or "sdwa" in p.op or "dst_sel" in p.mods:
                if vw & (c.rd | c.wr):
                    n = max(n, 1)
        if c.cls == "vmem" and sw & c.rd:
            n = max(n, 5)
        if c.cls in ("salu", "smem", "ctl") and sw & c.rd:
            n = max(n, 1)
        if any(x[0] == "exec" for x in p.wr):
            if c.cls == "mfma" or c.op.startswith(("v_permlane", "v_readlane", "v_readfirstlane", "v_writelane")):
                n = max(n, 4)
            if "dpp" in c.op or "row_" in c.mods:
                n = max(n, 5)
    elif p.cls == "mfma":
        big = p.passes == 8
        if c.cls == "mfma":
            if vw & c.srcab:
                n = max(n, 12 if big else 8)
            if vw & c.srcc:
                if not (c.srcc == vw and c.passes == p.passes):
                    n = max(n, 10 if big else 6)
            elif vw & c.wr:
                n = max(n, 10 if big else 6)
        elif c.cls in ("valu", "vmem", "ds"):
            if vw & (c.rd | c.wr):
                n = max(n, 12 if big else 8)
            if c.cls == "valu" and p.srcc & c.wr:
                n = max(n, 7 if big else 3)
            if c.cls in ("vmem", "ds") and p.srcc & c.wr:
                n = max(n, 7 if big else 3)
    elif p.cls == "salu":
        if ("m0", 0) in p.wr and c.cls == "vmem" and ("m0", 0) in c.rd:
            n = max(n, 1)
    elif p.cls == "vmem":
        if ("store" in p.op) and ("x4" in p.op or "x3" in p.op):
            data = regs_of(p.ops[0]) if p.op.startswith("buffer") else regs_of(p.ops[1])
            if data & c.wr:
                n = max(n, 2)
    return n


def insert_nops(ins):
    out = []
    hist = []
    snap = {}
    cur = [[]]
    seen = set()
    W = 24
    for i in ins:
        if i.cls == "label":
            seen.add(i.label)
            if i.label in snap:
                cur = cur + snap.pop(i.label)
            out.append(i)
            continue
        if i.cls == "raw":
            out.append(i)
            continue
        need = 0
        for h in cur:
            d = 0
            for p in reversed(h):
                k = _need(p, i)
                if k > d:
                    need = max(need, k - d)
                d += _states(p)
                if d >= 20:
                    break
        while need > 0:
            k = min(need, 16)
            nop = Ins("s_nop", [str(k - 1)])
            out.append(nop)
            for h in cur:
                h.append(nop)
            need -= k
        out.append(i)
        for h in cur:
            h.append(i)
            if len(h) > W:
                del h[0]
        if len(cur) > 1:
            base = cur[0]
            cur = [base] + [h for h in cur[1:] if not (len(h) >= W and len(base) >= W and
                                                       all(x is y for x, y in zip(h[-W:], base[-W:])))]
        if i.target is not None and i.target not in seen:
            snap.setdefault(i.target, []).extend([list(h) for h in cur])
        if i.op in ("s_branch", "s_endpgm"):
            cur = [[]]
    return out


def interleave(main, fill, start=0, per=None):
    out = []
    n = len(main) - start
    k = 0
    for idx, m in enumerate(main):
        out.extend(m if isinstance(m, list) else [m])
        if idx >= start:
            j = idx - start + 1
            tgt = len(fill) * j // n if per is None else min(len(fill), per * j)
            while k < tgt:
                f = fill[k]
                out.extend(f if isinstance(f, list) else [f])
                k += 1
    while k < len(fill):
        f = fill[k]
        out.extend(f if isinstance(f, list) else [f])
        k += 1
    return out


_SCC_W = ("s_add", "s_sub", "s_and", "s_or", "s_xor", "s_lsh", "s_ash", "s_cmp", "s_bitcmp", "s_min", "s_max",
          "s_bfe", "s_not", "s_andn", "s_orn", "s_abs", "s_bcnt", "s_nand", "s_nor", "s_xnor")
_SCC_R = ("s_cselect", "s_cbranch_scc", "s_addc", "s_subb", "s_cmov")
EXEC = {("exec", 0), ("exec", 1)}


def _fence(i):
    return i.cls in ("label", "raw", "ctl", "waittok", "smem", "other")


def _rd(i):
    return i.rd | (EXEC if i.cls in ("valu", "ds", "vmem", "mfma") else set())


def _indep(g, x):
    for i in g:
        if exec_local(g) and x.cls in ("valu", "ds", "vmem", "mfma"):
            wr = i.wr - EXEC
        else:
            wr = i.wr
        if wr & (_rd(x) | x.wr) or x.wr & _rd(i):
            return False
    return True


def exec_local(g):
    return any(i.wr & EXEC for i in g) and g[-1].cls == "salu" and bool(g[-1].wr & EXEC)


def _scc_dead(ins, k):
    for x in ins[k:k + 60]:
        if x.op.startswith(_SCC_R):
            return False
        if x.op.startswith(_SCC_W):
            return True
    return True


def cluster_mem(ins, dist):
    ins = list(ins)
    k = 0
    while k < len(ins):
        x = ins[k]
        if x.cls not in ("ds", "vmem"):
            k += 1
            continue
        lo = k
        need = set(x.rd) | EXEC
        while lo > 0 and ins[lo - 1].cls == "salu" and ins[lo - 1].wr & need and not ins[lo - 1].op.startswith(_SCC_R):
            lo -= 1
            need |= ins[lo].rd
        hi = k + 1
        narrowed = any(i.wr & EXEC for i in ins[lo:k])
        while narrowed and hi < len(ins) and ins[hi].cls in ("ds", "vmem"):
            hi += 1
        if narrowed:
            if hi < len(ins) and ins[hi].cls == "salu" and ins[hi].wr & EXEC:
                hi += 1
            else:
                k = hi
                continue
        g = ins[lo:hi]
        j = lo - 1
        nv = 0
        ok = False
        while j >= 0 and lo - j <= dist:
            y = ins[j]
            if y.cls in ("mfma", "ds", "vmem"):
                ok = not (y.cls == "vmem" and x.cls == "vmem")
                break
            if y.cls == "salu" and y.wr & EXEC:
                ok = j > 0 and ins[j - 1].cls in ("ds", "vmem") and x.cls != "vmem"
                break
            if _fence(y) or not _indep(g, y):
                break
            nv += y.cls == "valu"
            j -= 1
        if ok and nv and (not any(i.op.startswith(_SCC_W) for i in g) or _scc_dead(ins[j + 1:lo] + ins[hi:], 0)):
            ins[j + 1:hi] = g + ins[j + 1:lo]
        k = hi
    return ins


def hoist_waits(ins, dist):
    ins = list(ins)
    for k in range(len(ins)):
        x = ins[k]
        if x.op != "s_waitcnt" or x.waits[1] is not None or x.waits[2] is None or x.raw == "keep":
            continue
        j = k - 1
        nds = 0
        while j >= 0 and k - j <= dist and ins[j].cls in ("valu", "ds", "vmem", "salu"):
            nds += ins[j].cls == "ds"
            j -= 1
        if j >= 0 and ins[j].cls == "mfma" and j < k - 1 and ins[j + 1].cls != "salu" and x.waits[2] - nds >= 2:
            w = mk_wait(None, x.waits[2] - nds)
            ins[j + 1:k + 1] = [w] + ins[j + 1:k]
    return ins
```

```python
import copy
import math
import struct
import sys
from asmlib import *

NAME = "sequential_preLN__sliding_block__mixer_s_mlp__prompt"
KB = 1024

RGS = 352 * KB
O_OFF, T_OFF, H_OFF, X1_OFF = 0, 0, 256 * KB, 256 * KB
K_OFF, V_OFF, F_OFF = 64 * KB, 128 * KB, 192 * KB
STH_OFF, STX_OFF = 320 * KB, 324 * KB
TH_OFF = 328 * KB
RDY_OFF = 344 * KB
RDY2_OFF = RDY_OFF + 4096
RDY3_OFF = RDY_OFF + 5120
UFL_OFF = RDY_OFF + 6144
WS_BYTES = 32 * RGS
OOB = 0x80000000
MISC = 128 * KB
R0, R1 = 0, 64 * KB


def f2u(x):
    return "0x%08x" % struct.unpack("<I", struct.pack("<f", x))[0]


LOG2E = 1.4426950408889634
EPS = 1e-5
NEG_BIG = -1e30
DEF = dict(bar2=14, ft=0, ls0=0, su7=3, npos=9, cl=16, hw=10, n0=12, npre=10, la=9, gap=6, gap6=6, tl=0, d3=60, d4=65, d5=65, d6=45, la6=10, la7=11, touch=2, r2p=0, r2l=24, p7e=7, wsf=0, wsa=0, wsb=12, pg=1, plan='xG36', gstep=8, to=10, t1=11, t2=1, t3=1, t4=22, rot=1, rx=1, pr=4, qq='x0000000002222440', g2p=34, hstep=14, f1=3, l1=9, mk1=2, mu=1, mr=2, gb=-1, bq='x333023333344444444', mq='x0000110000000000', hq=2, wt=0, b3=14, sq0=22, stl=10, w4n1=50, w4n2=50, nm1=26, fap=104, fal=120, fac=10, pl=28, plg=7, fbp=70, fcp=8, fbl=3, fbc=10, fcl=16, fcc=23, lead=6, rbar=52, radd=54)


class Alloc:
    def __init__(self, lo, hi):
        self.free = set(range(lo, hi))
        self.low = len(self.free)

    def get(self, n=1, align=None, low=False):
        align = align or (1 if n == 1 else 2 if n == 2 else 4)
        for b in sorted(self.free, reverse=(n <= 2 and not low)):
            if b % align == 0 and all((b + i) in self.free for i in range(n)):
                for i in range(n):
                    self.free.remove(b + i)
                self.low = min(self.low, len(self.free))
                return b
        raise RuntimeError(f"out of registers for {n} (free {len(self.free)}): {sorted(self.free)}")

    def put(self, b, n=1):
        for i in range(n):
            assert (b + i) not in self.free, (b, i)
            self.free.add(b + i)


def atoms(ins):
    out, i = [], 0
    ins = flat(ins)
    while i < len(ins):
        j = i
        if ins[i].op.startswith(("s_cmp", "s_bitcmp")):
            k = i + 1
            while k < len(ins) and not ins[k].op.startswith(("s_cmp", "s_bitcmp", "s_add", "s_sub", "s_and", "s_or",
                                                             "s_lsh", "s_xor", "s_max", "s_min")):
                if ins[k].op.startswith(("s_cselect", "s_cbranch_scc")):
                    j = k
                k += 1
        out.append(ins[i:j + 1])
        i = j + 1
    return out


def flat(items):
    out = []
    for x in items:
        out.extend(x if isinstance(x, list) else [x])
    return out


class Gen:
    def __init__(self, opts):
        self.o = dict(DEF)
        self.o.update(opts)
        self.p = Prog()
        self.cold = []
        self.V = Alloc(1, 256)
        self.A = Alloc(256, 512)
        self.S = Alloc(4, 100)
        self.nlab = [0]
        self.nstamp = 0
        self.stamp_names = []
        self.fast = True

    def lab(self, base):
        self.nlab[0] += 1
        return f"L_{base}_{self.nlab[0]}"

    def stamp(self, name, q=None):
        if self.o.get("zz") and self.o["zz"].replace("_", " ") == name:
            for _ in range(500):
                (q or self.p).v_mov_b32(v(self.vTmp), v(self.vTmp))
        if not self.o.get("stamps"):
            return
        p = q or self.p
        k = self.nstamp
        self.nstamp += 1
        if self.fast:
            self.stamp_names.append(name)
        p.s_memtime(s(self.sT0, 2))
        p.wait(lgkm=0)
        p.s_and_b32(s(self.sT0), s(self.sT0), "0xffffff")
        p.s_lshl_b32(s(self.sT0 + 1), s(self.sSpin), 24)
        p.s_or_b32(s(self.sT0), s(self.sT0), s(self.sT0 + 1))
        p.v_writelane_b32(v(self.vStamp), s(self.sT0), k)

    def st(self, extra=""):
        return extra if self.fast else extra + " sc1"

    def dma(self, voff, srd, soff, m0=None, imm=0, token=None, pre=None):
        q = self.p.sub()
        if pre is not None:
            pre(q)
        if m0 is not None:
            if m0[0] is None:
                q.s_mov_b32("m0", m0[1])
            else:
                q.s_add_u32("m0", s(m0[0]), m0[1])
        if soff is not None:
            q.s_add_u32(s(self.sDma), s(soff[0]), soff[1])
        q.buffer_load_dwordx4(v(voff), s(srd, 4), s(self.sDma),
                              mods="offen " + (f"offset:{imm} " if imm else "") + "lds", token=token)
        return q.ins

    def marker_max(self, q, regs, t):
        regs = list(regs)
        for k, tmp in ((0, t), (1, self.vTmp)):
            if len(regs) > k and regs[k] >= 256:
                q.v_accvgpr_read_b32(v(tmp), r(regs[k]))
                regs[k] = tmp
        if len(regs) == 1:
            return regs[0]
        if len(regs) == 2:
            q.v_max_u32(v(t), v(regs[0]), v(regs[1]))
            return t
        q.v_max3_u32(v(t), v(regs[0]), v(regs[1]), v(regs[2]))
        rest = regs[3:]
        while rest:
            if len(rest) == 1:
                q.v_max_u32(v(t), v(t), v(rest[0]))
                rest = []
            else:
                q.v_max3_u32(v(t), v(t), v(rest[0]), v(rest[1]))
                rest = rest[2:]
        return t

    def stale(self, q0, q1, regs, kind):
        t = self.vChk
        if kind == "nan":
            x = self.marker_max(q0, regs, t)
            q1.v_cmp_eq_u32("vcc", -1, v(x))
            return
        a_, b_ = regs
        table = dict(zero="0xa8", one="0x2a", x1="0x7e")[kind]
        q0.v_bitop3_b32(v(t), v(a_), v(b_), 1, mods=f"bitop3:{table}")
        if kind == "x1":
            q0.v_and_b32(v(t), "0x10001", v(t))
        q1.v_cmp_ne_u32("vcc", 0, v(t))

    def check3(self, regs, reload, left=0, code=0, kind="nan"):
        L, Rt, Gv = self.lab("retry"), self.lab("ret"), self.lab("go")
        q0, q1, q2 = self.p.sub(), self.p.sub(), self.p.sub()
        self.stale(q0, q1, regs, kind)
        q2.s_cbranch_vccnz(L)
        q2.label(Rt)
        c = self.p.sub()
        c.label(L)
        c.s_sub_u32(s(self.sSpin), s(self.sSpin), 1)
        c.s_cbranch_scc1(Gv)
        z = self.p.sub()
        reload(z)
        for i in z.ins:
            if i.cls == "vmem":
                i.wr = set()
        c.add(z.ins)
        c.wait(vm=left)
        self.stale(c, c, regs, kind)
        c.s_cbranch_vccnz(L)
        c.s_branch(Rt)
        c.label(Gv)
        self.giveup(c, code)
        c.s_branch(Rt)
        self.cold.append(c.ins)
        return [q0.ins, q1.ins, q2.ins]

    def check(self, regs, reload, left=0, code=0):
        return flat(self.check3(regs, reload, left, code))

    def giveup(self, c, code):
        c.s_mov_b32(s(self.sSpin), 0)
        if self.o.get("dbg"):
            c.v_mov_b32(v(self.vChk), code)
            c.v_mov_b32(v(self.vTmp), 16)
            c.buffer_store_dword(v(self.vChk), v(self.vTmp), s(self.sDBG, 4), 0, mods="offen")
        c.wait(vm=0)

    def rdy_check(self, vw, reload):
        p = self.p
        q = p.sub()
        L, Rt, Gv = self.lab("rdy"), self.lab("rret"), self.lab("rgo")

        def test(z):
            z.v_xor_b32(v(self.vChk), s(self.sNonce), v(vw[0]))
            for x in vw[1:]:
                z.v_xor_b32(v(self.vTmp), s(self.sNonce), v(x))
                z.v_or_b32(v(self.vChk), v(self.vChk), v(self.vTmp))
            z.v_cmp_lt_u32("vcc", 31, v(self.vChk))
            z.s_cbranch_vccnz(L)
        test(q)
        q.label(Rt)
        c = p.sub()
        c.label(L)
        c.s_sub_u32(s(self.sSpin), s(self.sSpin), 1)
        c.s_cbranch_scc1(Gv)
        reload(c)
        c.wait(vm=0)
        test(c)
        c.s_branch(Rt)
        c.label(Gv)
        self.giveup(c, 0x20)
        c.s_branch(Rt)
        self.cold.append(c.ins)
        return q.ins

    def line_store(self, q, soff):
        q.v_mov_b32(v(self.vChk), s(self.sWord))
        q.v_lshlrev_b32(v(self.vTmp), 2, v(0))
        q.s_mov_b32("exec_hi", 0)
        q.buffer_store_dword(v(self.vChk), v(self.vTmp), s(self.sWS, 4), s(soff), mods="offen sc1")
        q.s_mov_b32("exec_hi", -1)

    def transpose4(self, q, b):
        for i in range(2):
            q.v_permlane16_swap_b32(v(b + i), v(b + 2 + i))
            q.v_permlane16_swap_b32(v(b + 4 + i), v(b + 6 + i))
        for i in range(2):
            q.v_permlane32_swap_b32(v(b + i), v(b + 4 + i))
            q.v_permlane32_swap_b32(v(b + 2 + i), v(b + 6 + i))

    def prologue(self):
        p, S, V = self.p, self.S, self.V
        if self.o.get("stamps"):
            p.raw("  s_memtime s[100:101]")
        p.s_cmp_ge_u32(s(2), 256)
        p.s_cbranch_scc1("L_end")
        srds = dict(X=(0, 2048 * 512 * 2), WQKV=(8, 512 * 1536 * 2), DBG=(72, 256),
                    WS=(80, WS_BYTES + (8 << 20 if self.o.get("stamps") else 0)),
                    WO=(16, 512 * 512 * 2), W1=(32, 512 * 512 * 2), W2=(40, 512 * 512 * 2),
                    W3=(48, 512 * 1792 * 2), W4=(56, 1792 * 512 * 2), OUT=(64, 2048 * 512 * 2))
        for k, (off, n) in srds.items():
            d = S.get(4, 4)
            setattr(self, "s" + k, d)
            if k in ("X", "WQKV", "DBG"):
                p.s_load_dwordx2(s(d, 2), s(0, 2), off)
        self.srds = srds
        self.sT0 = S.get(2, 2)
        sN0 = S.get(2, 2)
        self.sW, self.sRG, self.sCB, self.sNB = S.get(), S.get(), S.get(), S.get()
        self.sTmp, self.sTmp2, self.sSpin, self.sNonce, self.sDma = S.get(), S.get(), S.get(), S.get(), S.get()
        self.sRGB, self.sCB128, self.sWord = S.get(), S.get(), S.get()
        self.vTmp, self.vChk = V.get(), V.get()
        self.vL16, self.vJ, self.vG = V.get(), V.get(), V.get()
        p.s_lshr_b32(s(3), s(2), 3)
        if self.o.get("cbx"):
            p.s_xor_b32(s(3), s(3), self.o["cbx"])
        if self.o["touch"] == 1:
            c = S.get(2, 2)
            va = V.get(2)
            p.s_getpc_b64(s(c, 2))
            p.label("L_pc")
            p.s_cmp_ge_u32(s(3), "(L_slow-L_pc+32767)/32768")
            p.s_cbranch_scc1("L_notouch")
            p.s_lshl_b32(s(self.sTmp), s(3), 15)
            p.v_lshlrev_b32(v(self.vTmp), 7, v(0))
            p.v_add_u32(v(self.vTmp), s(self.sTmp), v(self.vTmp))
            p.v_min_u32(v(self.vTmp), "L_slow-L_pc-4", v(self.vTmp))
            p.v_mov_b32(v(va + 1), s(c + 1))
            p.v_add_co_u32(v(va), "vcc", s(c), v(self.vTmp))
            p.v_addc_co_u32(v(va + 1), "vcc", 0, v(va + 1), "vcc")
            p.raw(f"  global_load_dword {v(self.vChk)}, {v(va, 2)}, off")
            p.label("L_notouch")
            S.put(c, 2)
            V.put(va, 2)
        elif self.o["touch"] == 2:
            c = S.get(2, 2)
            va = V.get(2)
            p.s_getpc_b64(s(c, 2))
            p.label("L_pc")
            p.v_lshrrev_b32(v(self.vTmp), 4, v(0))
            p.v_lshlrev_b32(v(self.vTmp), 5, v(self.vTmp))
            p.v_add_u32(v(self.vTmp), s(3), v(self.vTmp))
            p.v_lshlrev_b32(v(self.vTmp), 7, v(self.vTmp))
            p.v_min_u32(v(self.vTmp), "L_slow-L_pc-4", v(self.vTmp))
            p.v_mov_b32(v(va + 1), s(c + 1))
            p.v_add_co_u32(v(va), "vcc", s(c), v(self.vTmp))
            p.v_addc_co_u32(v(va + 1), "vcc", 0, v(va + 1), "vcc")
            p.raw(f"  global_load_dword {v(self.vChk)}, {v(va, 2)}, off")
            S.put(c, 2)
            V.put(va, 2)
        if self.o.get("stamps"):
            self.vStamp = V.get()
            p.v_mov_b32(v(self.vStamp), 0)
            p.s_mov_b32(s(self.sSpin), 1 << 16)
        p.v_lshrrev_b32(v(self.vTmp), 6, v(0))
        p.v_and_b32(v(0), 63, v(0))
        p.v_readfirstlane_b32(s(self.sW), v(self.vTmp))
        p.s_and_b32(s(self.sCB), s(3), 7)
        p.s_lshr_b32(s(self.sNB), s(3), 3)
        p.s_and_b32(s(self.sRG), s(2), 7)
        p.s_lshl_b32(s(self.sRG), s(self.sRG), 2)
        p.s_add_u32(s(self.sRG), s(self.sRG), s(self.sNB))
        p.s_lshl_b32(s(self.sCB128), s(self.sCB), 7)
        p.v_lshrrev_b32(v(self.vG), 4, v(0))
        for k in ("X", "WQKV"):
            d = getattr(self, "s" + k)
            p.s_mov_b32(s(d + 2), srds[k][1])
            p.s_mov_b32(s(d + 3), "0x20000" if k == "X" else s(self.sX + 3))
        self.sN0 = sN0

    def prologue2(self, p):
        for k, (off, n) in self.srds.items():
            if k not in ("X", "WQKV", "DBG"):
                p.s_load_dwordx2(s(getattr(self, "s" + k), 2), s(0, 2), off)
        if not self.o["npos"]:
            p.s_memrealtime(s(self.sN0, 2))
        p.s_and_b32(s(self.sNB), s(3), 15)
        p.s_mul_i32(s(self.sRGB), s(self.sRG), RGS)
        p.s_mov_b32(s(self.sSpin), 1 << 16)
        p.v_lshlrev_b32(v(self.vL16), 4, v(0))
        p.v_and_b32(v(self.vJ), 15, v(0))
        for k, (off, n) in self.srds.items():
            if k not in ("X", "WQKV"):
                d = getattr(self, "s" + k)
                p.s_mov_b32(s(d + 2), n)
                p.s_mov_b32(s(d + 3), s(self.sX + 3))
        p.s_mov_b32(s(self.sHalfMask), "0x0000ffff")
        p.s_mov_b32(s(self.sHalfMask + 1), s(self.sHalfMask))
        p.s_mov_b32(s(self.sQMask), "0x00010001")
        p.s_mov_b32(s(self.sQMask + 1), s(self.sQMask))

    def publish_nonce(self, p):
        p.s_or_b32(s(self.sN0 + 1), s(2), s(self.sW))
        p.s_cmp_eq_u32(s(self.sN0 + 1), 0)
        p.s_cselect_b32(s(self.sN0 + 1), 0, hex(OOB))
        p.v_mov_b32(v(self.vTmp), s(self.sN0))
        p.v_or_b32(v(self.vTmp), 1, v(self.vTmp))
        p.s_mov_b64("exec", 1)
        p.buffer_store_dword(v(self.vTmp), "off", s(self.sDBG, 4), s(self.sN0 + 1), mods="sc1")
        p.s_mov_b64("exec", -1)
        if self.o.get("stamps"):
            p.v_writelane_b32(v(self.vStamp), s(self.sN0), 62)
        self.S.put(self.sN0, 2)

    def touch(self, srd, voff, soff, nl, token=None):
        q = self.p.sub()
        if nl < 32:
            q.s_mov_b64("exec", hex((1 << nl) - 1))
        elif nl < 64:
            q.s_mov_b32("exec_hi", hex((1 << (nl - 32)) - 1))
        if isinstance(soff, tuple):
            q.s_add_u32(s(self.sPf), s(soff[0]), soff[1])
            soff = s(self.sPf)
        q.buffer_load_dword(r(self.vSink), v(voff), s(srd, 4), soff, mods="offen", token=token)
        if nl < 64:
            q.s_mov_b64("exec", -1)
        for i in q.ins:
            if i.cls == "vmem":
                i.wr = set()
        return q.ins

    def touch_setup(self):
        p, S, V = self.p, self.S, self.V
        self.aAddr = self.A.get(6, 4)
        self.vSink, self.vL128 = self.aAddr + 5, V.get()
        self.sPf, self.sGW = S.get(), S.get()
        gw = self.sGW
        p.s_lshr_b32(s(gw), s(2), 3)
        p.s_lshl_b32(s(gw), s(gw), 2)
        p.s_add_u32(s(gw), s(gw), s(self.sW))
        p.v_lshlrev_b32(v(self.vL128), 7, v(0))
        sx, skv, sg = S.get(), S.get(), S.get()
        vq = V.get()
        p.s_and_b32(s(sx), s(2), 7)
        p.s_lshl_b32(s(sx), s(sx), 7)
        p.s_add_u32(s(sx), s(sx), s(gw))
        p.s_lshl_b32(s(sx), s(sx), 11)
        p.s_mul_i32(s(skv), s(gw), 3072)
        p.s_add_u32(s(skv), s(skv), 1024)
        p.v_lshrrev_b32(v(vq), 3, v(0))
        p.v_mul_u32_u24(v(vq), 3072 - 1024, v(vq))
        p.v_add_u32(v(vq), v(vq), v(self.vL128))
        out = dict(x=[self.touch(self.sX, self.vL128, s(sx), 16)])
        for i, ch in enumerate("abcd"):
            out[ch] = [self.touch(self.sWQKV, self.vL128, (skv, i * 128 * 3072), 16)]
        q = p.sub()
        q.s_mul_i32(s(sx), s(gw), 4 * 3072)
        out["q"] = [q.ins + self.touch(self.sWQKV, vq, s(sx), 32)]
        q = p.sub()
        q.s_lshl_b32(s(sx), s(2), 2)
        q.s_add_u32(s(sx), s(sx), s(self.sW))
        q.s_mul_i32(s(sx), s(sx), 1536)
        out["G"] = [q.ins + self.touch(self.sWQKV, self.vL128, s(sx), 12)]
        self.vL1K = V.get()
        p.v_lshlrev_b32(v(self.vL1K), 10, v(0))
        p.v_or_b32(v(self.vL1K), 384, v(self.vL1K))
        q = p.sub()
        q.s_mul_i32(s(sx), s(gw), 12 * 1024)
        out["3"] = [q.ins + self.touch(self.sWQKV, self.vL1K, s(sx), 12)]
        q = p.sub()
        q.s_lshl_b32(s(sx), s(2), 1)
        q.s_lshr_b32(s(skv), s(self.sW), 1)
        q.s_add_u32(s(sx), s(sx), s(skv))
        q.s_mul_i32(s(sx), s(sx), 3072)
        q.s_and_b32(s(skv), s(self.sW), 1)
        q.s_lshl_b32(s(skv), s(skv), 9)
        q.s_add_u32(s(sx), s(sx), s(skv))
        out["Q"] = [q.ins + self.touch(self.sWQKV, self.vL128, s(sx), 4)]
        c = S.get(4, 4)
        self.chip_split(p, c, sg, ((self.sWO, 512), (self.sW1, 512)), 8)
        out["g"] = [self.touch(c, self.vL128, s(sg), 8)] if self.o["pg"] else []
        q = p.sub()
        q.s_and_b32(s(sx), s(self.sRG), -2)
        q.s_mul_i32(s(sx), s(sx), RGS)
        q.s_add_u32(s(sx), s(sx), UFL_OFF)
        out["f"] = [q.ins + self.touch(self.sWS, self.vL128, s(sx), 6)]
        self.touch_free = ([vq, self.vL1K], [sx, skv, sg], c)
        self.ntouch = len(p.ins)
        return out

    def chip_split(self, p, c, sg, mats, nl):
        p.s_lshl_b32(s(sg), s(2), 2)
        p.s_add_u32(s(sg), s(sg), s(self.sW))
        p.s_mul_i32(s(sg), s(sg), nl * 128)
        p.s_mov_b64(s(c, 2), s(mats[0][0], 2))
        p.s_mov_b32(s(c + 2), mats[0][1] * KB)
        p.s_mov_b32(s(c + 3), "0x20000")
        for srd, n in mats[1:]:
            p.s_cmp_ge_u32(s(sg), s(c + 2))
            p.s_cselect_b64(s(c, 2), s(srd, 2), s(c, 2))
            p.s_cselect_b32(s(self.sTmp), s(c + 2), 0)
            p.s_cselect_b32(s(c + 2), n * KB, s(c + 2))
            p.s_sub_u32(s(sg), s(sg), s(self.sTmp))

    def g2(self):
        cg, sg = self.sG2 = self.S.get(4, 4), self.S.get()
        q = self.p.sub()
        self.chip_split(q, cg, sg, ((self.sW2, 512), (self.sW3, 1792), (self.sW4, 1792)), 32)
        q.v_lshlrev_b32(v(self.vTmp), 7, v(0))
        return q.ins + self.touch(cg, self.vTmp, s(sg), 32) if self.o["pg"] else []

    def touch3(self, srd, rows, on):
        if not on:
            return []
        n = rows // 128
        q = self.p.sub()
        q.s_mul_i32(s(self.sPf), s(self.sGW), n * 1024)
        return q.ins + self.touch(srd, self.vL128, s(self.sPf), n)

    def w_dma_voff(self, p, dst, rowstride, mapping, qconst=None, swz32=False, col=None):
        V = self.V
        rho, pos, t, f = V.get(), V.get(), V.get(), V.get()
        p.v_lshrrev_b32(v(rho), 3, v(0))
        p.v_and_b32(v(pos), 7, v(0))
        if qconst is None:
            p.s_mov_b32(s(self.sTmp2), s(self.sW))
        else:
            p.s_mov_b32(s(self.sTmp2), qconst)
        p.v_bfe_u32(v(f), v(rho), 1, 1)
        if swz32:
            p.v_lshlrev_b32(v(f), 1, v(f))
        else:
            p.s_and_b32(s(self.sTmp), s(self.sTmp2), 1)
            p.s_lshl_b32(s(self.sTmp), s(self.sTmp), 1)
            p.v_or_b32(v(f), s(self.sTmp), v(f))
        p.v_lshlrev_b32(v(f), 1, v(f))
        p.v_xor_b32(v(pos), v(pos), v(f))
        p.v_lshlrev_b32(v(pos), 4, v(pos))
        if mapping == "nat":
            p.s_lshl_b32(s(self.sTmp), s(self.sTmp2), 3)
            p.v_add_u32(v(t), s(self.sTmp), v(rho))
        elif mapping == "m32":
            p.v_and_b32(v(t), 3, v(rho))
            p.v_lshrrev_b32(v(f), 2, v(rho))
            p.v_lshl_add_u32(v(t), v(f), 3, v(t))
            p.s_lshr_b32(s(self.sTmp), s(self.sTmp2), 1)
            p.s_lshl_b32(s(self.sTmp), s(self.sTmp), 4)
            p.s_and_b32(s(self.sTmp2), s(self.sTmp2), 1)
            p.s_lshl_b32(s(self.sTmp2), s(self.sTmp2), 2)
            p.s_add_u32(s(self.sTmp), s(self.sTmp), s(self.sTmp2))
            p.v_add_u32(v(t), s(self.sTmp), v(t))
        elif mapping == "m16":
            p.v_and_b32(v(t), 3, v(rho))
            p.v_lshrrev_b32(v(f), 2, v(rho))
            p.v_lshl_add_u32(v(t), v(f), 4, v(t))
            p.s_lshl_b32(s(self.sTmp), s(self.sTmp2), 2)
            p.v_add_u32(v(t), s(self.sTmp), v(t))
        p.s_mov_b32(s(self.sTmp), rowstride)
        p.v_mad_u32_u24(v(dst), v(t), s(self.sTmp), v(pos))
        if col is not None:
            p.v_add_u32(v(dst), s(col), v(dst))
        for x in (rho, pos, t, f):
            V.put(x)

    def w_read_addr16(self, p, dst, unit_const=None, base=0, gshift=12, swz32=False):
        V = self.V
        r_, f = V.get(), V.get()
        p.v_bfe_u32(v(r_), v(0), 2, 2)
        if swz32:
            p.v_and_b32(v(f), 2, v(r_))
        else:
            p.v_lshrrev_b32(v(f), 1, v(r_))
            p.v_and_b32(v(dst), 1, v(self.vG))
            p.v_lshl_or_b32(v(f), v(dst), 1, v(f))
        p.v_xor_b32(v(f), s(self.sW) if unit_const is None else unit_const, v(f))
        p.v_lshlrev_b32(v(f), 5, v(f))
        p.v_lshl_add_u32(v(f), v(r_), 7, v(f))
        p.v_lshl_add_u32(v(f), v(self.vG), gshift, v(f))
        p.v_and_b32(v(r_), 3, v(0))
        p.v_lshl_add_u32(v(dst), v(r_), 3, v(f))
        if base:
            p.v_add_u32(v(dst), base, v(dst))
        V.put(r_)
        V.put(f)

    @staticmethod
    def img(st):
        return (st // 4) * 16384 + (st % 4) * 1024

    def w_image(self, voff, srd, const, rowstride, ldsbase, token):
        out = []
        for st in range(16):
            def pre(q, g=st // 4):
                q.s_add_u32("m0", s(self.sG[g]), s(self.sLw))
                q.s_mul_i32(s(self.sGrp), s(self.sG[g]), rowstride // 128)
                if ldsbase:
                    q.s_add_u32("m0", "m0", ldsbase)
            out.append(self.dma(voff, srd, (self.sGrp, const + (st % 4) * (32 * rowstride - 1024)), None,
                                imm=(st % 4) * 1024, token=token, pre=pre if st % 4 == 0 else None))
        return out

    def addr_O(self, p, dst, u):
        p.v_and_b32(v(dst), 1, v(self.vG))
        p.v_lshlrev_b32(v(dst), 14, v(dst))
        p.v_lshrrev_b32(v(u), 1, v(self.vG))
        p.v_lshl_add_u32(v(dst), v(u), 8, v(dst))
        p.v_lshl_add_u32(v(dst), v(self.vJ), 4, v(dst))

    def addr_stat(self, p, dst):
        p.v_lshrrev_b32(v(dst), 5, v(0))
        p.v_lshlrev_b32(v(dst), 2, v(dst))
        p.v_lshl_add_u32(v(dst), v(self.vJ), 3, v(dst))

    def addr_T(self, p, vm, vh, t, u):
        S = self.S
        sSh = S.get()
        p.s_lshr_b32(s(self.sTmp), s(self.sCB), 2)
        p.s_add_u32(s(sSh), s(self.sTmp), 1)
        p.s_sub_i32(s(self.sTmp), 0, s(sSh))
        p.s_bitcmp1_b32(s(self.sCB), 1)
        p.s_cselect_b32(s(sSh), s(self.sTmp), s(sSh))
        p.s_lshl_b32(s(self.sTmp), s(self.sW), 4)
        p.s_add_i32(s(self.sTmp), s(self.sTmp), s(sSh))
        p.v_add_u32(v(t), s(self.sTmp), v(self.vJ))
        p.v_lshrrev_b32(v(u), 4, v(t))
        p.v_lshlrev_b32(v(u), 14, v(u))
        p.v_and_b32(v(vm), 15, v(t))
        p.v_lshl_add_u32(v(vm), v(vm), 4, v(u))
        p.v_lshl_add_u32(v(vm), v(self.vG), 8, v(vm))
        p.v_mov_b32(v(u), hex(OOB))
        p.v_cmp_gt_u32("vcc", 64, v(t))
        p.v_cndmask_b32(v(vm), v(u), v(vm), "vcc")
        p.s_cmp_gt_i32(s(sSh), 0)
        p.s_cselect_b32(s(self.sTmp), 1, -1)
        p.s_add_i32(s(self.sTmp), s(self.sTmp), s(self.sRG))
        p.s_mul_i32(s(self.sTmp2), s(self.sTmp), RGS)
        p.s_add_u32(s(self.sTmp2), s(self.sTmp2), TH_OFF)
        p.s_cmp_lt_u32(s(self.sTmp), 32)
        p.s_cselect_b32(s(self.sTmp2), s(self.sTmp2), hex(OOB))
        p.v_and_b32(v(vh), 1, v(t))
        p.v_lshlrev_b32(v(vh), 4, v(vh))
        p.v_lshl_add_u32(v(vh), v(self.vG), 5, v(vh))
        p.v_add_u32(v(vh), s(self.sTmp2), v(vh))
        p.v_cndmask_b32(v(vh), v(vh), v(u), "vcc")
        S.put(sSh)

    def p6_ids(self, p):
        S = self.S
        self.sSrc, self.sT2, self.sU = S.get(), S.get(), S.get()
        p.s_and_b32(s(self.sSrc), s(self.sRG), -2)
        p.s_lshr_b32(s(self.sTmp), s(self.sW), 1)
        p.s_add_u32(s(self.sSrc), s(self.sSrc), s(self.sTmp))
        p.s_mul_i32(s(self.sSrc), s(self.sSrc), RGS)
        p.s_and_b32(s(self.sT2), s(self.sW), 1)
        p.s_lshl_b32(s(self.sT2), s(self.sT2), 1)
        p.s_lshr_b32(s(self.sU), s(self.sNB), 2)
        p.s_lshl_b32(s(self.sU), s(self.sU), 16)
        p.s_and_b32(s(self.sTmp), s(self.sNB), 3)
        p.s_lshl_b32(s(self.sTmp), s(self.sTmp), 12)
        p.s_add_u32(s(self.sU), s(self.sU), s(self.sTmp))
        p.s_add_u32(s(self.sU), s(self.sU), s(self.sSrc))

    def addr_U(self, p, dst, t, u):
        p.v_and_b32(v(t), 1, v(self.vG))
        p.v_add_u32(v(t), s(self.sT2), v(t))
        p.v_lshrrev_b32(v(u), 5, v(0))
        p.v_lshlrev_b32(v(dst), 14, v(t))
        p.v_lshl_add_u32(v(dst), v(u), 8, v(dst))
        p.v_lshl_add_u32(v(dst), v(self.vJ), 4, v(dst))

    def phase1(self):
        p, S, V, A, o = self.p, self.S, self.V, self.A, self.o
        t, u = V.get(), V.get()
        self.t, self.u = t, u
        vXd, vWd = [V.get(), V.get()], [V.get(), V.get()]
        p.v_lshrrev_b32(v(t), 3, v(0))
        p.v_and_b32(v(u), 7, v(0))
        p.v_xor_b32(v(u), v(self.vG), v(u))
        p.v_lshlrev_b32(v(u), 4, v(u))
        p.v_lshl_add_u32(v(vXd[0]), v(t), 10, v(u))
        p.v_xor_b32(v(vXd[1]), 64, v(vXd[0]))
        p.v_add_u32(v(vXd[1]), 7 * 1024, v(vXd[1]))
        vWq = V.get()
        self.w_dma_voff(p, vWq, 3072, "nat", col=self.sCB128)
        p.v_add_u32(v(vWd[0]), 1024, v(vWq))
        p.v_add_u32(v(vWd[1]), 32 * 3072 - 1024, v(vWq))
        sXo, sLx = S.get(), S.get()
        self.sLw = S.get()
        sP0, sP = S.get(), S.get()
        p.s_lshl_b32(s(sXo), s(self.sRG), 2)
        p.s_add_u32(s(sXo), s(sXo), s(self.sW))
        p.s_lshl_b32(s(sXo), s(sXo), 14)
        p.s_lshl_b32(s(sLx), s(self.sW), 11)
        p.s_lshl_b32(s(self.sLw), s(self.sW), 12)
        if o.get("rx"):
            p.s_add_u32(s(sP0), s(self.sRG), s(self.sCB))
            p.s_and_b32(s(sP0), s(sP0), o["rx"] & 3)
            if o["rx"] & 4:
                p.s_and_b32(s(sP), s(self.sRG), 4)
                p.s_or_b32(s(sP0), s(sP0), s(sP))
        elif o["rot"] & 8:
            p.s_lshl_b32(s(sP0), s(self.sRG), 1)
            if o["rot"] & 2:
                p.s_add_u32(s(sP0), s(sP0), s(self.sCB))
            if o["rot"] & 4:
                p.s_bfe_u32(s(sP), s(self.sRG), (1 << 16) | 2)
                p.s_add_u32(s(sP0), s(sP0), s(sP))
        else:
            p.s_mov_b32(s(sP0), 0)
        toks = [p.new_token() for _ in range(8)]
        tokQ = p.new_token()
        pieces, minstep = [], []

        def rotP(q, P):
            if o.get("rx"):
                q.s_xor_b32(s(sP), s(sP0), P)
                return
            q.s_add_u32(s(sP), s(sP0), P)
            q.s_and_b32(s(sP), s(sP), 7)
        for P in range(8):
            slot = P % 6
            ms = -1 if P < 6 else 2 * (P - 5) - 1

            def prex(q, P=P):
                rotP(q, P)
                q.s_lshl_b32(s(self.sDma), s(sP), 7)
                q.s_add_u32(s(self.sDma), s(self.sDma), s(sXo))

            def prew(q):
                q.s_mul_i32(s(self.sDma), s(sP), 2 * 32 * 3072)
            pieces.append(self.dma(vXd[0], self.sX, None, (sLx, P * 8192), token=toks[P], pre=prex))
            pieces.append(self.dma(vXd[1], self.sX, None, None, imm=1024, token=toks[P]))
            for pc in range(4):
                pieces.append(self.dma(vWd[pc // 2], self.sWQKV, None,
                                       (self.sLw, R1 + slot * 16384) if pc == 0 else None,
                                       imm=pc * 1024, token=toks[P], pre=prew if pc == 0 else None))
            minstep += [-1, -1, ms, ms, ms, ms]
        for j in range(8):
            def preq(q, j=j):
                rotP(q, j)
                q.s_mul_i32(s(self.sDma), s(sP), 2 * 32 * 3072)
            pieces.append(self.dma(vWq, self.sWQKV, None, (self.sLw, R1 + (2 + j // 2) * 16384 + (j % 2) * 2048),
                                   token=tokQ, pre=preq))
            pieces.append(self.dma(vWd[1], self.sWQKV, None, None, imm=1024, token=tokQ))
            minstep += [5 + 2 * (j // 2)] * 2
        p.wait(lgkm=0)
        self.stamp("start")
        if o.get("stamps"):
            p.s_sub_u32(s(100), s(self.sT0), s(100))
            p.s_and_b32(s(100), s(100), "0xffffff")
            p.v_writelane_b32(v(self.vStamp), s(100), 59)
        n0 = o["n0"]
        for x in pieces[:6]:
            p.add(x)
        self.prologue2(p)
        nxt = n0
        self.stamp("stage0 issued")
        if o.get("diag0"):
            p.wait_vm(toks[0])
            self.stamp("stage0 landed")
        pmain, p = p, p.sub()
        self.p = p
        tch = self.touch_setup()
        pois = A.get(4)
        self.aPois = pois
        for i in range(4):
            p.v_accvgpr_write_b32(r(pois + i), -1)
        self.sHeadOff = S.get()
        sKo = S.get()
        p.s_lshl_b32(s(self.sHeadOff), s(self.sCB), 2)
        p.s_add_u32(s(self.sHeadOff), s(self.sHeadOff), s(self.sW))
        p.s_lshl_b32(s(self.sHeadOff), s(self.sHeadOff), 11)
        p.s_add_u32(s(sKo), s(self.sHeadOff), s(self.sRGB))
        p.s_add_u32(s(sKo), s(sKo), K_OFF)
        vVst = V.get()
        p.v_and_b32(v(t), 1, v(self.vG))
        p.v_lshlrev_b32(v(t), 9, v(t))
        p.v_lshrrev_b32(v(u), 1, v(self.vG))
        p.v_lshl_add_u32(v(t), v(u), 8, v(t))
        p.v_lshl_add_u32(v(vVst), v(self.vJ), 4, v(t))
        p.v_add_u32(v(vVst), V_OFF - K_OFF, v(vVst))
        nearly = len(p.ins)
        vXr, vXo, vWr = [V.get(), V.get()], [V.get(), V.get()], [V.get(), V.get()]
        for sp in range(2):
            p.v_lshrrev_b32(v(t), 1, v(self.vJ))
            p.v_add_u32(v(u), 4 * sp, v(self.vG))
            p.v_xor_b32(v(t), v(t), v(u))
            p.v_lshlrev_b32(v(t), 4, v(t))
            p.v_lshl_add_u32(v(vXr[sp]), v(self.vJ), 7, v(t))
            p.v_add_u32(v(vXo[sp]), s(sLx), v(vXr[sp]))
        self.w_read_addr16(p, vWr[0], None, R1)
        p.v_add_u32(v(vWr[1]), 65536, v(vWr[0]))
        ones = V.get(4)
        self.vOnes = ones
        for i in range(4):
            p.v_mov_b32(v(ones + i), "0x3f803f80")
        self.VH = [[[V.get(4) for _ in range(2)] for _ in range(2)] for _ in range(4)]
        self.vCpat = V.get()
        p.v_and_b32(v(t), 11, v(self.vJ))
        p.v_cmp_eq_u32("vcc", 0, v(t))
        p.v_cndmask_b32(v(self.vCpat), 0, v(ones), "vcc")
        for d in range(4):
            for kt in range(2):
                for sp in range(2):
                    for i in range(4):
                        p.v_mov_b32(v(self.VH[d][kt][sp] + i), v(self.vCpat))
        self.BD, self.BE = V.get(16), V.get(16)
        p.v_and_b32(v(t), 31, v(0))
        p.v_lshrrev_b32(v(u), 5, v(0))
        p.v_lshlrev_b32(v(u), 2, v(u))
        p.v_sub_u32(v(t), v(t), v(u))
        p.v_mov_b32(v(u), f2u(NEG_BIG))
        cm = [S.get(2, 2) for _ in range(4)]
        for gg in range(4):
            for r_ in range(4):
                p.v_cmp_le_i32(s(cm[r_], 2), 8 * gg + r_, v(t))
            for r_ in range(4):
                p.v_cndmask_b32(v(self.BD + 4 * gg + r_), v(u), 0, s(cm[r_], 2))
                p.v_cndmask_b32(v(self.BE + 4 * gg + r_), 0, v(u), s(cm[r_], 2))
        for x in cm:
            S.put(x, 2)
        vO, vSt, vTm, vTh, vU = V.get(), V.get(), V.get(), V.get(), V.get()
        self.addr_O(p, vO, u)
        self.addr_stat(p, vSt)
        self.addr_T(p, vTm, vTh, t, u)
        self.p6_ids(p)
        self.addr_U(p, vU, t, u)
        for i, x in enumerate((vO, vSt, vTm, vTh, vU)):
            p.v_accvgpr_write_b32(r(self.aAddr + i), v(x))
        V.put(vU), V.put(vTm), V.put(vTh)
        vMs = vSt
        p.v_bfe_u32(v(t), v(0), 3, 1)
        p.v_and_b32(v(u), 7, v(0))
        p.v_lshlrev_b32(v(u), 4, v(u))
        p.s_lshl_b32(s(self.sTmp), s(self.sCB), 11)
        p.s_add_u32(s(self.sTmp), s(self.sTmp), TH_OFF)
        p.s_cmp_eq_u32(s(self.sW), 0)
        p.s_cselect_b32(s(self.sTmp), s(self.sTmp), hex(OOB))
        p.v_lshl_add_u32(v(vMs), v(t), 10, v(u))
        p.v_add_u32(v(vMs), s(self.sTmp), v(vMs))
        p.s_lshl_b32(s(self.sTmp), s(self.sW), 10)
        p.s_add_u32(s(self.sTmp), s(self.sTmp), s(self.sCB128))
        p.s_add_u32(s(self.sTmp), s(self.sTmp), STH_OFF)
        p.v_lshl_add_u32(v(u), v(t), 12, v(u))
        p.v_add_u32(v(u), s(self.sTmp), v(u))
        p.v_cndmask_b32(v(vMs), v(u), v(vMs), s(self.sHalfMask, 2))
        self.aPois2 = A.get(4)
        p.s_bitcmp1_b32(s(self.sCB), 1)
        p.s_cselect_b32(s(self.sTmp), 31, 0)
        p.s_cmp_eq_u32(s(self.sTmp), s(self.sRG))
        p.s_cselect_b32(s(self.sTmp), 1, 0)
        p.v_cndmask_b32(v(t), -1, 0, s(self.sHalfMask, 2))
        p.v_or_b32(v(u), s(self.sTmp), v(t))
        p.v_accvgpr_write_b32(r(self.aPois2), v(u))
        for i in range(1, 4):
            p.v_accvgpr_write_b32(r(self.aPois2 + i), v(t))
        self.sTile, self.sStat, self.sO = S.get(), S.get(), S.get()
        p.s_lshl_b32(s(self.sTile), s(self.sW), 14)
        p.s_add_u32(s(self.sTile), s(self.sTile), s(self.sRGB))
        p.s_lshl_b32(s(self.sStat), s(self.sW), 10)
        p.s_add_u32(s(self.sStat), s(self.sStat), s(self.sRGB))
        p.s_lshr_b32(s(self.sO), s(self.sHeadOff), 2)
        p.s_add_u32(s(self.sO), s(self.sO), s(self.sRGB))
        self.sCB2K = S.get()
        p.s_lshl_b32(s(self.sCB2K), s(self.sCB), 11)
        self.sRdy = S.get()
        p.s_lshr_b32(s(self.sRdy), s(self.sHeadOff), 4)
        p.s_add_u32(s(self.sRdy), s(self.sRdy), RDY_OFF)
        p.s_getreg_b32(s(self.sWord), "hwreg(HW_REG_XCC_ID, 0, 4)")
        p.s_lshl_b32(s(self.sWord), s(self.sWord), 1)
        vR1 = V.get()
        p.v_and_b32(v(t), 3, v(0))
        p.v_add_u32(v(t), 1, v(t))
        p.v_min_u32(v(t), s(self.sRG), v(t))
        p.v_sub_u32(v(t), s(self.sRG), v(t))
        p.s_mov_b32(s(self.sTmp), RGS)
        p.v_mul_lo_u32(v(vR1), v(t), s(self.sTmp))

        su, p = p.ins, pmain
        self.p = p
        q = p.sub()
        self.publish_nonce(q)
        early = [] if o["npos"] else [q.ins]
        pubn = q.ins
        rest_p = list(pieces[6:n0])
        plan = str(o["plan"])
        for ch in plan:
            if ch == "6":
                early += rest_p[:6]
                rest_p = rest_p[6:]
            else:
                early += tch.pop(ch)
        early += rest_p
        p.add(su[:self.ntouch])
        if o["npos"]:
            p.s_memrealtime(s(self.sN0, 2))
            early.insert(o["npos"], pubn)
        k0 = max(nearly - self.ntouch, 0)
        body = su[self.ntouch:]
        p.add(interleave(atoms(body), early))

        self.arena = V.get(72)
        X = [[self.arena + 20 * b + 4 * i for i in range(5)] for b in range(2)]
        acc = [[self.arena + 40 + 16 * b + 4 * i for i in range(4)] for b in range(2)]
        Wf = [[V.get(4) for _ in range(2)] for _ in range(2)]
        cs = [V.get(4) for _ in range(2)]
        stS, stQ = V.get(4), V.get(4)
        vNon = V.get()

        def wofs(slot, piece):
            return slot // 4, (slot % 4) * 16384 + piece * 1024

        def reads(st):
            P, sp = st // 2, st % 2
            q = p.sub()
            bi = st % 2
            q.ds_read_b128(v(X[bi][0], 4), v(vXr[sp]), mods=f"offset:{P*8192}")
            for part in range(2):
                win, off = wofs(P % 6, sp * 2 + part)
                for h in range(2):
                    q.ds_read_b64_tr_b16(v(Wf[bi][part] + 2 * h, 2), v(vWr[win]), mods=f"offset:{off + h*512}")
            for tt in range(1, 4):
                q.ds_read_b128(v(X[bi][tt], 4), v(vXr[sp]), mods=f"offset:{P*8192 + tt*2048}")
            q.ds_read_b128(v(X[bi][4], 4), v(vXo[sp]), mods=f"offset:{P*8192}")
            return q.ins

        def mfmas(st):
            q = p.sub()
            bi = st % 2
            M = q.v_mfma_f32_16x16x32_bf16
            C = lambda rr: (v(rr, 4) if st else 0)
            for tt in range(4):
                M(v(acc[0][tt], 4), v(Wf[bi][0], 4), v(X[bi][tt], 4), C(acc[0][tt]))
                M(v(acc[1][tt], 4), v(X[bi][tt], 4), v(Wf[bi][1], 4), C(acc[1][tt]))
                if tt == 0:
                    M(v(cs[0], 4), v(Wf[bi][0], 4), v(ones, 4), C(cs[0]))
                    M(v(cs[1], 4), v(ones, 4), v(Wf[bi][1], 4), C(cs[1]))
            M(v(stS, 4), v(ones, 4), v(X[bi][4], 4), C(stS))
            M(v(stQ, 4), v(X[bi][4], 4), v(X[bi][4], 4), C(stQ))
            return q.ins

        def nonce_load(q):
            q.buffer_load_dword(v(vNon), "off", s(self.sDBG, 4), 0, mods="sc1")

        def rdy1_publish():
            q = p.sub()
            L, Rt, Gv = self.lab("nonce"), self.lab("nret"), self.lab("ngo")
            q.v_readfirstlane_b32(s(self.sNonce), v(vNon))
            q.s_cmp_eq_u32(s(self.sNonce), 0)
            q.s_cbranch_scc1(L)
            q.label(Rt)
            q.s_xor_b32(s(self.sWord), s(self.sWord), s(self.sNonce))
            c = p.sub()
            c.label(L)
            c.s_sub_u32(s(self.sSpin), s(self.sSpin), 1)
            c.s_cbranch_scc1(Gv)
            nonce_load(c)
            c.wait(vm=0)
            c.v_readfirstlane_b32(s(self.sNonce), v(vNon))
            c.s_cmp_eq_u32(s(self.sNonce), 0)
            c.s_cbranch_scc1(L)
            c.s_branch(Rt)
            c.label(Gv)
            self.giveup(c, 0x10)
            c.s_branch(Rt)
            self.cold.append(c.ins)
            return q.ins

        self.stamp("setup done")
        p.wait_vm(toks[0])
        self.stamp("own stage0")
        p.s_barrier()
        self.stamp("p1 first stage")
        p.add(reads(0))
        for st in range(16):
            if o.get("stp1") and st % 2 == 0 and st:
                self.stamp("a%d" % st)
            mm = mfmas(st)
            pre = []
            if st % 2 == 1 and st < 15:
                P = (st + 1) // 2
                pre, mm = mm[:2], mm[2:]
                p.add(pre)
                p.wait(lgkm=0)
                assert nxt >= 6 * (P + 1)
                p.wait_vm(toks[P])
                p.s_barrier()
            fill = []
            k = 0
            quota = o["pr"] if nxt < 48 else int(o["qq"].lstrip("x")[st], 16)
            while k < quota and nxt < len(pieces) and minstep[nxt] <= st and (nxt != 48 or k == 0):
                fill.append(pieces[nxt])
                nxt += 1
                k += 1
            rd = reads(st + 1) if st < 15 else []
            mix = interleave(rd, fill) if rd else fill
            mix = [[x] if not isinstance(x, list) else x for x in self.regroup(rd, fill)]
            if st == o.get("nstep", 5):
                q = p.sub()
                nonce_load(q)
                mix.append(q.ins)
            if st == o.get("rstep", 10):
                mix.append(rdy1_publish())
            if st == o["gstep"]:
                mix += tch.pop("g", []) + tch.pop("f", [])
            p.add(interleave(mm, mix))
        self.stamp("p1a end")
        for x in vXo:
            V.put(x)
        V.put(vXd[0]), V.put(vXd[1]), V.put(vWd[0])
        for bi in range(2):
            V.put(Wf[bi][1], 4)
        m, var = V.get(2), V.get()
        p.v_and_b32(v(t), 3, v(0))
        p.v_cmp_eq_u32("vcc", 1, v(t))
        p.v_cndmask_b32(v(var), v(stQ), v(stQ + 1), "vcc")
        p.v_cmp_eq_u32("vcc", 2, v(t))
        p.v_cndmask_b32(v(var), v(var), v(stQ + 2), "vcc")
        p.v_cmp_eq_u32("vcc", 3, v(t))
        p.v_cndmask_b32(v(var), v(var), v(stQ + 3), "vcc")
        p.v_mul_f32(v(m + 1), f2u(1 / 512), v(stS))
        p.v_mul_f32(v(var), f2u(1 / 512), v(var))
        p.v_fma_f32(v(var), "-" + v(m + 1), v(m + 1), v(var))
        p.v_max_f32(v(var), 0, v(var))
        p.v_add_f32(v(var), f2u(EPS), v(var))
        p.v_rsq_f32(v(m), v(var))
        p.v_lshrrev_b32(v(t), 2, v(self.vJ))
        p.v_cmp_eq_u32("vcc", v(t), v(self.vG))
        p.v_mul_f32(v(m + 1), "-" + v(m + 1), v(m))
        p.s_lshr_b32(s(self.sTmp), s(sLx), 4)
        p.s_add_u32(s(self.sTmp), s(self.sTmp), R1)
        p.v_lshlrev_b32(v(t), 3, v(self.vJ))
        p.v_add_u32(v(u), s(self.sTmp), v(t))
        p.s_mov_b64("exec", "vcc")
        p.ds_write_b64(v(u), v(m, 2))
        p.s_mov_b64("exec", -1)
        S.put(sLx)
        V.put(m, 2), V.put(var), V.put(stS, 4), V.put(stQ, 4)
        p.v_add_u32(v(t), R1, v(t))
        p.v_lshlrev_b32(v(u), 5, v(self.vG))
        p.v_add_u32(v(u), R1, v(u))
        p.wait(lgkm=0)
        p.s_barrier()
        stA = [V.get(2) for _ in range(4)]
        stB = [X[0][0], X[0][2]]
        for tt in range(4):
            p.ds_read_b64(v(stA[tt], 2), v(t), mods=f"offset:{tt*128}")

        def rdB(tt):
            p.ds_read_b128(v(stB[tt % 2], 4), v(u), mods=f"offset:{tt*128}")
            p.ds_read_b128(v(stB[tt % 2] + 4, 4), v(u), mods=f"offset:{tt*128+16}")
        rdB(0), rdB(1)
        tmp = X[0][4]

        def affine_qk(q, c, ac, tt, dst):
            for i in (0, 2):
                q.v_pk_mul_f32(v(tmp + i, 2), v(c + i, 2), v(stA[tt], 2), mods="op_sel:[0,1] op_sel_hi:[1,1]")
            for i in (0, 2):
                q.v_pk_fma_f32(v(tmp + i, 2), v(ac + i, 2), v(stA[tt], 2), v(tmp + i, 2), mods="op_sel_hi:[1,0,1]")
            q.v_cvt_pk_bf16_f32(v(dst), v(tmp), v(tmp + 1))
            q.v_cvt_pk_bf16_f32(v(dst + 1), v(tmp + 2), v(tmp + 3))

        tokKV = p.new_token()
        self.vK = [V.get(4), V.get(4)]
        vF = [V.get(4), V.get(4)]
        for kt in range(2):
            affine_qk(p, cs[0], acc[0][2 * kt], 2 * kt, self.vK[kt])
            affine_qk(p, cs[0], acc[0][2 * kt + 1], 2 * kt + 1, self.vK[kt] + 2)
            p.v_permlane16_swap_b32(v(self.vK[kt]), v(self.vK[kt] + 2))
            p.v_permlane16_swap_b32(v(self.vK[kt] + 1), v(self.vK[kt] + 3))
            p.buffer_store_dwordx4(v(self.vK[kt], 4), v(self.vL16), s(self.sWS, 4), s(sKo),
                                   mods=f"offen offset:{kt*1024} sc1", token=tokKV)
        for kt in range(2):
            for half in range(2):
                tt = 2 * kt + half
                b = stB[half]
                for r_ in range(4):
                    p.v_mul_f32(v(tmp + r_), v(cs[1]), v(b + 2 * r_ + 1))
                for r_ in range(4):
                    p.v_fmac_f32(v(tmp + r_), v(acc[1][tt] + r_), v(b + 2 * r_))
                if kt == 0:
                    rdB(tt + 2)
                p.v_cvt_pk_bf16_f32(v(vF[kt] + 2 * half), v(tmp), v(tmp + 1))
                p.v_cvt_pk_bf16_f32(v(vF[kt] + 2 * half + 1), v(tmp + 2), v(tmp + 3))
            for i in range(2):
                p.v_permlane16_swap_b32(v(vF[kt] + i), v(vF[kt] + 2 + i))
            for i in range(2):
                p.v_permlane32_swap_b32(v(vF[kt] + i), v(vF[kt] + 2 + i))
            p.buffer_store_dwordx4(v(vF[kt], 4), v(vVst), s(self.sWS, 4), s(sKo), mods=f"offen offset:{kt*1024} sc1",
                                   token=tokKV)
        V.put(vVst)
        S.put(sKo)
        for part in range(2):
            V.put(cs[part], 4)
        for x in pieces[nxt:]:
            p.add(x)
        V.put(vWd[1]), V.put(vWq), S.put(sP0), S.put(sP)
        p.v_mov_b32(v(self.vL128), v(self.vL1K))
        for x in self.touch_free[0]:
            V.put(x)
        for x in self.touch_free[1]:
            S.put(x)
        S.put(self.touch_free[2], 4)
        self.stamp("kv stored")
        self.KH = [[A.get(4) for _ in range(2)] for _ in range(4)]
        accQ, csQ = acc[0], X[1][4]

        def readsQ(st):
            P, sp = st // 2, st % 2
            q = p.sub()
            bi = st % 2
            win, off = wofs(2 + st // 4, st % 4)
            q.ds_read_b128(v(X[bi][0], 4), v(vXr[sp]), mods=f"offset:{P*8192}")
            for h in range(2):
                q.ds_read_b64_tr_b16(v(Wf[bi][0] + 2 * h, 2), v(vWr[win]), mods=f"offset:{off + h*512}")
            for tt in range(1, 4):
                q.ds_read_b128(v(X[bi][tt], 4), v(vXr[sp]), mods=f"offset:{P*8192 + tt*2048}")
            return q.ins

        def mfmasQ(st):
            q = p.sub()
            bi = st % 2
            C = lambda rr: (v(rr, 4) if st else 0)
            q.v_mfma_f32_16x16x32_bf16(v(accQ[0], 4), v(Wf[bi][0], 4), v(X[bi][0], 4), C(accQ[0]))
            q.v_mfma_f32_16x16x32_bf16(v(csQ, 4), v(Wf[bi][0], 4), v(ones, 4), C(csQ))
            for tt in range(1, 4):
                q.v_mfma_f32_16x16x32_bf16(v(accQ[tt], 4), v(Wf[bi][0], 4), v(X[bi][tt], 4), C(accQ[tt]))
            return q.ins

        def mk(fn):
            q = p.sub()
            fn(q)
            return q.ins
        tokP = p.new_token()
        self.tokP = tokP

        sA, sF = S.get(), S.get()
        p.s_add_u32(s(sA), s(self.sTile), s(self.sCB2K))
        p.s_lshl_b32(s(sF), s(self.sCB), 10)
        p.s_add_u32(s(sF), s(sF), s(self.sTile))
        self.tokO = p.new_token()

        def mark4(voff, sb, sc, imm, tok=tokP):
            def f(q):
                if sc:
                    q.s_add_u32(s(self.sTmp), s(sb), sc)
                q.buffer_store_dwordx4(r(pois, 4), v(voff), s(self.sWS, 4), s(self.sTmp if sc else sb),
                                       mods=f"offen offset:{imm} sc1", token=tok)
            return mk(f)

        def marksmall(q):
            q.s_mov_b32("exec_hi", 0)
            q.buffer_store_dwordx4(r(self.aPois2, 4), v(vMs), s(self.sWS, 4), s(self.sRGB), mods="offen sc1", token=tokP)
            q.s_mov_b32("exec_hi", -1)
        marks = [mark4(vO, self.sO, 0, 0, self.tokO), mark4(vO, self.sO, 32768, 0, self.tokO)]
        marks += [mark4(self.vL16, sA, H_OFF, 0), mark4(self.vL16, sA, H_OFF, 1024)]
        marks += [mk(marksmall)]
        marks += [mark4(self.vL16, sF, F_OFF, 0)]

        if o.get("mks"):
            marks = [m_ if c_ == "1" else [] for m_, c_ in zip(marks, o["mks"].lstrip("x"))]

        def rdy1_pub(q):
            q.wait_vm(tokKV)
            q.s_add_u32(s(self.sTmp), s(self.sRdy), s(self.sRGB))
            self.line_store(q, self.sTmp)

        def rdy1_load(q):
            q.buffer_load_dword(v(vNon), v(vR1), s(self.sWS, 4), s(self.sRdy), mods="offen sc1")
        sB = [S.get() for _ in range(4)]
        self.sHalo = sB
        for d in range(4):
            p.s_sub_i32(s(sB[d]), s(self.sRG), d + 1)
            p.s_max_i32(s(sB[d]), s(sB[d]), 0)
            p.s_mul_i32(s(sB[d]), s(sB[d]), RGS)
            p.s_add_u32(s(sB[d]), s(sB[d]), s(self.sHeadOff))
            p.s_add_u32(s(sB[d]), s(sB[d]), K_OFF)
        self.vVld = V.get()
        p.v_lshrrev_b32(v(u), 5, v(0))
        p.v_lshlrev_b32(v(u), 8, v(u))
        p.v_lshl_add_u32(v(u), v(self.vJ), 4, v(u))
        p.v_add_u32(v(self.vVld), V_OFF - K_OFF, v(u))
        self.vV = [[vF[0], V.get(4)], [vF[1], V.get(4)]]
        for kt in range(2):
            for i in range(4):
                p.v_mov_b32(v(self.vV[kt][1] + i), v(self.vCpat))
        for tt in range(4):
            p.v_mul_f32(v(stA[tt]), f2u(0.25 * LOG2E), v(stA[tt]))
            p.v_mul_f32(v(stA[tt] + 1), f2u(0.25 * LOG2E), v(stA[tt] + 1))
        p.wait_vm(tokQ)
        p.s_barrier()
        self.stamp("p1b start")
        p.add(readsQ(0))
        for kt in range(2):
            for i in range(4):
                p.v_permlane16_swap_b32(v(vF[kt] + i), v(self.vV[kt][1] + i))
        V.put(self.vCpat)

        hstep = o["hstep"]
        halo = self.halo_loads(range(4))
        nm = 0
        nh = 0
        for st in range(16):
            fill = []
            if o.get("stp2") and st in (3, 4, 9, 14, 15):
                self.stamp("b%d" % st)
            if st == o["f1"]:
                fill.append(mk(rdy1_pub))
            if st == o["gb"]:
                fill.append(self.g2())
            if st == o["to"]:
                fill.append(self.touch3(self.sWO, 512, 1))
            if st == o["t1"]:
                fill.append(self.touch3(self.sW1, 512, 1))
            if st == o["l1"]:
                fill.append(mk(rdy1_load))
            if st < hstep:
                tgt = min(o["mk1"], nm + int(o["mq"].lstrip("x")[st], 16))
                fill += marks[nm:tgt]
                nm = tgt
            else:
                if st == hstep:
                    fill.append(self.rdy_check([vNon], rdy1_load))
                tgt = min(len(halo), nh + o["hq"])
                fill += halo[nh:tgt]
                nh = tgt
            rd = readsQ(st + 1) if st < 15 else []
            p.add(interleave(mfmasQ(st), self.regroup(rd, fill)))
        p.wait(lgkm=0)
        p.s_barrier()
        self.stamp("p1b end")
        V.put(vR1), V.put(vNon)
        for x in vXr + vWr:
            V.put(x)
        for bi in range(2):
            V.put(Wf[bi][0], 4)
        self.aXres = A.get(8)
        rest = halo[nh:]
        self.marks = marks[nm:]
        q = p.sub()
        q.v_lshlrev_b32(v(t), 10, v(self.vJ))
        q.v_lshl_add_u32(v(t), v(self.vG), 5, v(t))
        q.s_add_u32(s(self.sTmp2), s(self.sCB128), s(sXo))
        q.buffer_load_dwordx4(r(self.aXres, 4), v(t), s(self.sX, 4), s(self.sTmp2), mods="offen")
        q.buffer_load_dwordx4(r(self.aXres + 4, 4), v(t), s(self.sX, 4), s(self.sTmp2), mods="offen offset:16")
        rest.append(q.ins)
        self.vQ = [V.get(4), V.get(4)]
        q = p.sub()
        for qt in range(2):
            affine_qk(q, csQ, accQ[2 * qt], 2 * qt, self.vQ[qt])
            affine_qk(q, csQ, accQ[2 * qt + 1], 2 * qt + 1, self.vQ[qt] + 2)
            q.v_permlane16_swap_b32(v(self.vQ[qt]), v(self.vQ[qt] + 2))
            q.v_permlane16_swap_b32(v(self.vQ[qt] + 1), v(self.vQ[qt] + 3))
        nq = min(len(rest), 2)
        p.add(interleave(q.ins, rest[:nq]))
        self.pending = rest[nq:]
        V.put(ones, 4)
        self.pending_free = ([vO, vMs], [sA, sF, sXo])
        for x in stA:
            V.put(x, 2)

    @staticmethod
    def regroup(rd, fill):
        out = []
        n, k = len(rd), 0
        if not n:
            return list(fill)
        for i, x in enumerate(rd):
            out.append([x])
            tgt = len(fill) * (i + 1) // n
            while k < tgt:
                out.append(fill[k])
                k += 1
        return out

    def halo_loads(self, ds):
        out = []
        for d in ds:
            for kt in range(2):
                q = self.p.sub()
                q.buffer_load_dwordx4(r(self.KH[d][kt], 4), v(self.vL16), s(self.sWS, 4), s(self.sHalo[d]),
                                      mods=f"offen offset:{kt*1024} sc1")
                out.append(q.ins)
            for kt in range(2):
                q = self.p.sub()
                q.s_mov_b64("exec", s(self.sHalfMask, 2))
                for sp in range(2):
                    q.buffer_load_dwordx4(v(self.VH[d][kt][sp], 4), v(self.vVld), s(self.sWS, 4), s(self.sHalo[d]),
                                          mods=f"offen offset:{kt*1024+sp*512} sc1")
                q.s_mov_b64("exec", -1)
                out.append(q.ins)
        return out

    def phase2(self):
        p, S, V, A, o = self.p, self.S, self.V, self.A, self.o
        M = lambda q, d, x, y, c: q.v_mfma_f32_32x32x16_bf16(d, x, y, c)
        t, u = self.t, self.u
        KH, VH, BD, BE = self.KH, self.VH, self.BD, self.BE
        Sb = [self.arena, self.arena + 16]
        O = [self.arena + 32, self.arena + 48]
        Pb = self.arena + 64
        self.O, self.Pb = O, Pb
        units = [(0, self.vK[0], BD, self.vV[0]), (1, self.vK[0], None, self.vV[0]), (1, self.vK[1], BD, self.vV[1])]
        gstart = {}
        for d in range(4):
            gstart[len(units)] = d
            lst = [(0, 0, 0), (0, 1, 0), (1, 0, 0), (1, 1, 0)] if d < 3 else [(0, 0, 1), (0, 1, 0), (1, 1, 1)]
            for qt, kt, e in lst:
                units.append((qt, KH[d][kt], BE if e else None, VH[d][kt]))
        n = len(units)
        vWd32, vWd16 = V.get(), V.get()
        self.vWd16 = vWd16
        q = p.sub()
        self.w_dma_voff(q, vWd32, 1024, "m32", col=self.sCB128)
        self.w_dma_voff(q, vWd16, 1024, "m16", col=self.sCB128)
        self.sG, self.sGrp = [S.get() for _ in range(4)], S.get()
        for g in range(4):
            if o["rot"] & 1:
                q.s_add_u32(s(self.sG[g]), s(self.sRG), g)
                q.s_and_b32(s(self.sG[g]), s(self.sG[g]), 3)
                q.s_lshl_b32(s(self.sG[g]), s(self.sG[g]), 14)
            else:
                q.s_mov_b32(s(self.sG[g]), g << 14)
        p.add(q.ins)
        self.tokWo, self.tokW1 = p.new_token(), p.new_token()
        bg = list(self.pending)
        npend = len(bg)
        wo = self.w_image(vWd32, self.sWO, 0, 1024, R0, self.tokWo)
        w1 = self.w_image(vWd16, self.sW1, 0, 1024, R1, self.tokW1)
        q = p.sub()
        q.wait_vm(self.tokO)
        vRa = V.get()
        q.v_mov_b32(v(u), s(self.sWord))
        q.s_lshl_b32(s(self.sTmp), s(self.sW), 2)
        q.s_add_u32(s(self.sTmp), s(self.sTmp), MISC + 1024)
        q.v_mov_b32(v(t), s(self.sTmp))
        q.ds_write_b32(v(t), v(u))
        q.v_and_b32(v(t), 3, v(0))
        q.v_lshlrev_b32(v(t), 2, v(t))
        q.v_add_u32(v(t), MISC + 1024, v(t))
        q.ds_read_b32(v(vRa), v(t))
        q.v_cmp_ne_u32("vcc", s(self.sWord), v(vRa))
        q.s_add_u32(s(self.sTmp), s(self.sRGB), s(self.sCB128))
        q.s_add_u32(s(self.sTmp), s(self.sTmp), RDY2_OFF)
        q.s_cmp_eq_u64("vcc", 0)
        q.s_cselect_b32(s(self.sTmp), s(self.sTmp), hex(OOB))
        self.line_store(q, self.sTmp)
        rdy2_pub = q.ins
        vRb = V.get()

        def rdy2_addr(z):
            z.s_bitcmp1_b32(s(self.sRG), 0)
            z.s_cselect_b32(s(self.sTmp), 1, -1)
            z.s_add_i32(s(self.sTmp), s(self.sTmp), s(self.sRG))
            z.s_max_i32(s(self.sTmp), s(self.sTmp), 0)
            z.s_min_i32(s(self.sTmp), s(self.sTmp), 31)
            z.s_and_b32(s(self.sTmp2), s(self.sRG), -2)
            z.v_bfe_u32(v(vRb), v(0), 3, 1)
            z.v_add_u32(v(vRb), s(self.sTmp2), v(vRb))
            z.v_mov_b32(v(t), s(self.sTmp))
            z.v_cndmask_b32(v(vRb), v(t), v(vRb), s(self.sHalfMask, 2))
            z.s_mov_b32(s(self.sTmp), RGS)
            z.v_mul_lo_u32(v(vRb), v(vRb), s(self.sTmp))
            z.v_and_b32(v(t), 7, v(0))
            z.v_lshl_add_u32(v(vRb), v(t), 7, v(vRb))
            z.v_add_u32(v(vRb), RDY2_OFF, v(vRb))

        def rdy2_load(z):
            z.buffer_load_dword(v(vRa), v(vRb), s(self.sWS, 4), 0, mods="offen sc1")
        q = p.sub()
        rdy2_addr(q)
        rdy2_load(q)
        ww = wo + w1
        bg += ww[:o["r2p"]] + [rdy2_pub] + ww[o["r2p"]:o["r2l"]] + [q.ins] + ww[o["r2l"]:]
        if o["gb"] < 0:
            bg.insert(npend + o["g2p"], self.g2())
        if o["t1"] >= 16:
            bg.insert(npend + o["t1"] - 16, self.touch3(self.sW1, 512, 1))
        if o["to"] >= 16:
            bg.insert(npend + o["to"] - 16, self.touch3(self.sWO, 512, 1))
        per = o.get("bgper", 3)
        marks = list(self.marks)
        pos = 0
        fresh = {0, 1}
        Ldone = self.lab("attn_done")

        def Sm(q, k):
            qt, K, C, _ = units[k]
            M(q, v(Sb[k % 2], 16), r(K, 4), v(self.vQ[qt], 4), v(C, 16) if C is not None else 0)

        def unit_body(k, sub=None):
            q = p.sub()
            qt, _, _, Vv = units[k]
            b = Sb[k % 2]

            def ex(i):
                if sub is not None:
                    q.v_sub_f32(v(b + i), v(b + i), v(sub[qt]))
                q.v_exp_f32(v(b + i), v(b + i))
            for i in range(8):
                ex(i)
            for i in range(4):
                q.v_cvt_pk_bf16_f32(v(Pb + i), v(b + 2 * i), v(b + 2 * i + 1))
            for i in range(8, 16):
                ex(i)
                if i == 9:
                    M(q, v(O[qt], 16), v(Vv[0], 4), v(Pb, 4), 0 if qt in fresh else v(O[qt], 16))
                    fresh.discard(qt)
            for i in range(4, 8):
                q.v_cvt_pk_bf16_f32(v(Pb + i), v(b + 2 * i), v(b + 2 * i + 1))
            M(q, v(O[qt], 16), v(Vv[1], 4), v(Pb + 4, 4), v(O[qt], 16))
            return q.ins

        Sm(p, 0)
        for k in range(n):
            if k + 1 < n:
                if k + 1 in gstart:
                    assert pos >= npend or gstart[k + 1] == 0
                    if gstart[k + 1] == 0:
                        while pos < npend:
                            p.add(bg[pos])
                            pos += 1
                        self.stamp("p2 stage A-")
                    if gstart[k + 1] > 0:
                        self.stamp("grp%d" % gstart[k + 1])
                Sm(p, k + 1)
            tgt = min(len(bg), pos + int(o["bq"].lstrip("x")[k], 16)) if k + 1 < n else len(bg)
            now = bg[pos:tgt]
            if k >= o["mu"]:
                km = o["mr"] if k + 1 < n else len(marks)
                now = marks[:km] + now
                marks = marks[km:]
            p.add(interleave(unit_body(k), now))
            if o.get("sta"):
                self.stamp("u%d" % k)
            pos = tgt
            if k + 1 in gstart:
                Lx = self.lab("attn_exit")
                p.s_cmp_le_u32(s(self.sRG), gstart[k + 1])
                p.s_cbranch_scc1(Lx)
                c = p.sub()
                c.label(Lx)
                c.add([copy.copy(x) for x in flat(marks + bg[pos:])])
                c.wait(vm=0)
                c.s_branch(Ldone)
                self.cold.append(c.ins)
        p.label(Ldone)
        self.stamp("p2 units")
        for x in self.pending_free[0]:
            V.put(x)
        for x in self.pending_free[1]:
            S.put(x)
        Lfb, Lnorm = self.lab("attn_truemax"), self.lab("attn_norm")
        lo, hi = struct.unpack("<I", struct.pack("<f", 2.0 ** -40))[0], struct.unpack("<I", struct.pack("<f", 2.0 ** 40))[0]
        p.v_subrev_u32(v(t), hex(lo), v(O[0] + 8))
        p.v_subrev_u32(v(u), hex(lo), v(O[1] + 8))
        p.v_max_u32(v(t), v(t), v(u))
        p.v_cmp_le_u32("vcc", hex(0 if o.get("forcefb") else hi - lo), v(t))
        p.s_cbranch_vccnz(Lfb)
        p.label(Lnorm)
        c = p.sub()
        c.label(Lfb)
        c.wait(vm=0)
        mx = [V.get(), V.get()]
        Lp2, Lfd = self.lab("fb_p2"), self.lab("fb_done")
        seen = set()
        for k in range(n):
            Sm(c, k)
            qt, b = units[k][0], Sb[k % 2]
            if qt not in seen:
                seen.add(qt)
                c.v_max_f32(v(mx[qt]), v(b), v(b + 1))
                rest = range(2, 16, 2)
            else:
                rest = range(0, 16, 2)
            for i in rest:
                c.v_max3_f32(v(mx[qt]), v(b + i), v(b + i + 1), v(mx[qt]))
            if k + 1 in gstart:
                c.s_cmp_le_u32(s(self.sRG), gstart[k + 1])
                c.s_cbranch_scc1(Lp2)
        c.label(Lp2)
        for qt in range(2):
            c.v_mov_b32(v(t), v(mx[qt]))
            c.v_permlane32_swap_b32(v(mx[qt]), v(t))
            c.v_max_f32(v(mx[qt]), v(mx[qt]), v(t))
        fresh = {0, 1}
        for k in range(n):
            Sm(c, k)
            c.add(unit_body(k, mx))
            if k + 1 in gstart:
                c.s_cmp_le_u32(s(self.sRG), gstart[k + 1])
                c.s_cbranch_scc1(Lfd)
        c.label(Lfd)
        c.s_nop(15)
        c.s_branch(Lnorm)
        self.cold.append(c.ins)
        V.put(mx[0]), V.put(mx[1])
        vO = V.get()
        self.vOst = vO
        p.v_rcp_f32(v(t), v(O[0] + 8))
        p.v_rcp_f32(v(u), v(O[1] + 8))
        p.v_accvgpr_read_b32(v(vO), r(self.aAddr + 0))
        for qt in range(2):
            for i in range(8):
                p.v_mul_f32(v(O[qt] + i), v(O[qt] + i), v((t, u)[qt]))
            for i in range(4):
                p.v_cvt_pk_bf16_f32(v(Pb + 4 * qt + i), v(O[qt] + 2 * i), v(O[qt] + 2 * i + 1))
            p.v_and_b32(v(Pb + 4 * qt), -2, v(Pb + 4 * qt))
        p.add(self.rdy_check([vRa], rdy2_load))
        p.v_cmp_ne_u32("vcc", s(self.sWord), v(vRa))
        p.v_accvgpr_write_b32(r(self.aAddr + 0), v(vRb))
        p.s_and_b64("vcc", "vcc", s(self.sHalfMask, 2))
        if o.get("forceslow"):
            p.s_branch("L_slow")
        else:
            p.s_cbranch_scc1("L_slow")
        for d in range(4):
            for kt in range(2):
                A.put(KH[d][kt], 4)
                for sp in range(2):
                    V.put(VH[d][kt][sp], 4)
        for x in [BD, BE] + Sb + O:
            V.put(x, 16)
        for x in self.vK + self.vQ + self.vV[0] + self.vV[1]:
            V.put(x, 4)
        for x in (vWd32, self.vVld, vRa, vRb):
            V.put(x)
        for x in self.sHalo + [self.sHeadOff, self.sRdy]:
            S.put(x)
        S.put(self.sG2[0], 4), S.put(self.sG2[1])
        A.put(self.aPois, 4), A.put(self.aPois2, 4)

    def colsum16(self, areg, dst_addr, dst_off, fr, c):
        rd, mm = [], []
        for st in range(16):
            for h in range(2):
                q = self.p.sub()
                q.ds_read_b64_tr_b16(r(fr[st] + 2 * h, 2), v(areg), mods=f"offset:{self.img(st) + h*512}")
                rd.append(q.ins)
            q = self.p.sub()
            q.v_mfma_f32_16x16x32_bf16(v(c, 4), r(fr[st], 4), v(self.vOnes, 4), v(c, 4) if st else 0)
            mm.append(q.ins)
        q = self.p.sub()
        q.s_mov_b64("exec", s(self.sQMask, 2))
        q.ds_write_b128(v(dst_addr), v(c, 4), mods=f"offset:{dst_off}")
        q.s_mov_b64("exec", -1)
        mm.append(q.ins)
        return rd, mm

    def w16_read(self, st, win):
        q = self.p.sub()
        R = self.o["npre"]
        for nt in range(4):
            for h in range(2):
                q.ds_read_b64_tr_b16(r(self.WB[st % R][nt] + 2 * h, 2), v(self.vWa[win][nt]),
                                     mods=f"offset:{self.img(st) + h*512}")
        return q.ins

    def paced(self, items, loads, delay, gap):
        out, k = [], 0
        for i, x in enumerate(items):
            if i >= delay and (i - delay) % gap == 0 and k < len(loads):
                out.append(loads[k])
                k += 1
            out.append(x)
        return out + loads[k:]

    def gemm64(self, win, off, voffs, acc, first_c, window, delay, late=None, tail=None, extra_loads=None, code=0,
               prebar=None, kind="zero", bar2=None):
        p, o = self.p, self.o
        R, LA = o["npre"], o["la"]
        act, sB = self.act, self.sAct
        for k in range(4):
            p.s_add_u32(s(sB[k]), s(self.sTile), off + 4096 * k)

        def ld(q, st):
            q.buffer_load_dwordx4(v(act + 4 * st, 4), v(voffs(st)), s(self.sWS, 4), s(sB[st // 4]),
                                  mods=f"offen offset:{(st%4)*1024} sc1")

        def ldi(st):
            q = p.sub()
            ld(q, st)
            return q.ins
        items = window([[x] for st in range(R) for x in self.w16_read(st, win)])
        nv = [i for i, x in enumerate(items) if any(y.cls == "vmem" for y in x)]
        delay = max([delay] + [i + 1 for i in nv])
        p.add(flat(self.paced(items, [ldi(st) for st in range(LA)], delay, o["gap"])))
        self.stamp("window")
        late = list(late or [])
        tail = list(tail or [])
        bar = 16 - R + 1
        fifo = list(range(LA))

        def chk(st):
            after = fifo[fifo.index(st + 1) + 1:]
            more = [k for k in after if k >= 0]
            return self.check3([act + 4 * st, act + 4 * st + 4],
                               lambda c: [ld(c, k) for k in [st, st + 1] + more],
                               len(more) if len(more) == len(after) else 0, code + st, kind)
        p.add(flat(chk(0)))
        if o.get("stg"):
            self.stamp("c0")
        for st in range(16):
            if o.get("stg") and st in (4, 8, 12):
                self.stamp("s%d" % st)
            q = p.sub()
            for nt in range(4):
                c0 = (v(acc + 4 * nt, 4) if (st or first_c) else 0)
                q.v_mfma_f32_16x16x32_bf16(v(acc + 4 * nt, 4), r(self.WB[st % R][nt], 4), v(act + 4 * st, 4), c0)
            mm = q.ins
            slot = [[], [], [], []]
            if st + LA < 16:
                slot[0] += ldi(st + LA)
                fifo.append(st + LA)
            if st == max(16 - LA, 0) and extra_loads:
                slot[0] += flat(extra_loads)
                fifo.append(-1)
            if st == bar and tail:
                q = p.sub()
                q.wait(lgkm=0)
                if prebar is not None:
                    q.add(prebar)
                q.s_barrier()
                slot[0] = q.ins + slot[0]
            if st >= bar and tail and st + LA >= 16 + o["tl"]:
                slot[0 if st % 2 else 2] += tail.pop(0)
                fifo.append(-1)
            if st >= 16 - R and late:
                k = -(-len(late) // (16 - st))
                for i, x in enumerate(late[:k]):
                    assert not any(y.cls == "vmem" for y in x)
                    sl = i * 4 // k
                    if st % 2 and sl == 3 and st < 15:
                        sl = 2
                    slot[sl] += x
                late = late[k:]
            if st % 2 == 1 and st < 15:
                c3 = chk(st + 1)
                for i in range(3):
                    slot[1 + i] += c3[i]
            if st == bar2:
                q = p.sub()
                q.s_barrier()
                slot[3] += q.ins
            rd = self.w16_read(st + R, win) if st + R < 16 else []
            for nt in range(4):
                p.add(mm[nt])
                p.add(rd[2 * nt:2 * nt + 2])
                p.add(slot[nt])
        self.stamp("gemm")
        return tail

    def stats_partial(self, val, off, vSt):
        V = self.V
        p = self.p.sub()
        sm, sq = V.get(2), V.get(2)
        p.v_pk_add_f32(v(sm, 2), v(val, 2), v(val + 2, 2))
        p.v_pk_mul_f32(v(sq, 2), v(val, 2), v(val, 2))
        p.v_pk_fma_f32(v(sq, 2), v(val + 2, 2), v(val + 2, 2), v(sq, 2))
        for i in range(4, 16, 2):
            p.v_pk_add_f32(v(sm, 2), v(sm, 2), v(val + i, 2))
            p.v_pk_fma_f32(v(sq, 2), v(val + i, 2), v(val + i, 2), v(sq, 2))
        p.v_add_f32(v(sm), v(sm), v(sm + 1))
        p.v_add_f32(v(sq), v(sq), v(sq + 1))
        p.s_add_u32(s(self.sTmp2), s(self.sStat), s(self.sCB128))
        p.s_add_u32(s(self.sTmp2), s(self.sTmp2), off)
        p.v_permlane32_swap_b32(v(sm), v(sq))
        p.v_add_f32(v(sm), v(sm), v(sq))
        p.v_mov_b32(v(sq), v(sm))
        p.v_permlane16_swap_b32(v(sm), v(sq))
        p.v_add_f32(v(sm), v(sm), v(sq))
        p.buffer_store_dword(v(sm), v(vSt), s(self.sWS, 4), s(self.sTmp2), mods=self.st("offen"))
        V.put(sm, 2), V.put(sq, 2)
        return p.ins

    def cvt_store(self, src, pk, voff, soff, x1=False):
        p = self.p
        if x1:
            p.s_mov_b32(s(self.sTmp), "0xfffefffe")
        for k in range(2):
            for i in range(4):
                p.v_cvt_pk_bf16_f32(v(pk + 4 * k + i), v(src + 8 * k + 2 * i), v(src + 8 * k + 2 * i + 1))
                if i == 1 and x1:
                    p.v_and_or_b32(v(pk + 4 * k), v(pk + 4 * k), s(self.sTmp), 1)
                elif i == 1:
                    p.v_and_b32(v(pk + 4 * k), -2, v(pk + 4 * k))
            p.buffer_store_dwordx4(v(pk + 4 * k, 4), v(voff), s(self.sWS, 4), s(soff),
                                   mods=self.st(f"offen offset:{k*1024}"))

    def gelu(self, x, n, cA, cB, cI, dst, tmp, packed=True):
        out = []
        for i in range(0, n, 2):
            t0 = tmp + (i % 4)
            g = self.p.sub()
            if packed:
                g.v_pk_mul_f32(v(t0, 2), v(x + i, 2), v(x + i, 2))
                g.v_pk_fma_f32(v(t0, 2), v(t0, 2), v(cB, 2), v(cA, 2), mods="op_sel_hi:[1,0,0]")
                g.v_pk_mul_f32(v(t0, 2), v(t0, 2), v(x + i, 2))
                g.v_exp_f32(v(t0), v(t0))
                g.v_exp_f32(v(t0 + 1), v(t0 + 1))
                g.v_pk_fma_f32(v(t0, 2), v(t0, 2), v(cI, 2), v(cI, 2), mods="op_sel_hi:[1,0,0]")
                g.v_rcp_f32(v(t0), v(t0))
                g.v_rcp_f32(v(t0 + 1), v(t0 + 1))
                g.v_pk_mul_f32(v(t0, 2), v(t0, 2), v(x + i, 2))
            else:
                for e in range(2):
                    g.v_mul_f32(v(t0 + e), v(x + i + e), v(x + i + e))
                for e in range(2):
                    g.v_fma_f32(v(t0 + e), v(t0 + e), v(cB), v(cA))
                for e in range(2):
                    g.v_mul_f32(v(t0 + e), v(t0 + e), v(x + i + e))
                for e in range(2):
                    g.v_exp_f32(v(t0 + e), v(t0 + e))
                for e in range(2):
                    g.v_fma_f32(v(t0 + e), v(t0 + e), v(cI), v(cI))
                for e in range(2):
                    g.v_rcp_f32(v(t0 + e), v(t0 + e))
                for e in range(2):
                    g.v_mul_f32(v(t0 + e), v(t0 + e), v(x + i + e))
            g.v_cvt_pk_bf16_f32(v(dst + i // 2), v(t0), v(t0 + 1))
            out.append(g.ins)
        res = []
        for k in range(0, len(out), 2):
            for x0, x1 in zip(out[k], out[k + 1]):
                res += [x0, x1]
        return res

    def gelu_consts(self, p, sc, cA, cB, cI):
        k1 = 2 * math.sqrt(2 / math.pi)
        p.v_mul_f32(v(cA), f2u(-k1 * LOG2E), v(sc))
        p.v_mul_f32(v(cB), v(sc), v(sc))
        p.v_rcp_f32(v(cI), v(sc))
        p.v_mul_f32(v(cB), v(cB), v(sc))
        p.v_mul_f32(v(cB), f2u(-k1 * 0.044715 * LOG2E), v(cB))

    def phase345(self):
        p, S, V, A, o = self.p, self.S, self.V, self.A, self.o
        t, u = self.t, self.u
        R = o["npre"]
        sub = p.sub
        p.wait_vm(self.tokP)
        p.buffer_store_dwordx4(v(self.Pb, 4), v(self.vOst), s(self.sWS, 4), s(self.sO), mods=self.st("offen"))
        p.s_add_u32(s(self.sTmp), s(self.sO), 32768)
        p.buffer_store_dwordx4(v(self.Pb + 4, 4), v(self.vOst), s(self.sWS, 4), s(self.sTmp), mods=self.st("offen"))
        self.stamp("o stored")
        V.put(self.vOst), S.put(self.sO)
        pk = self.Pb
        H = V.get(16)
        self.vOnes = V.get(4)
        self.tmp6 = V.get(4)
        self.c6 = V.get(2), V.get(2), V.get(2), V.get(2)
        self.wa6 = [[V.get(), V.get()], [V.get(), V.get()]]
        self.vd4 = [V.get() for _ in range(4)]
        self.vr4 = [V.get(low=True) for _ in range(3)]
        vCsW = V.get()
        self.WB = [[A.get(4) for _ in range(4)] for _ in range(R)]
        self.vWa = [[V.get() for _ in range(4)] for _ in range(2)]
        self.act = V.get(64)
        self.sAct = [S.get() for _ in range(4)]
        self.w_read_addr16(p, self.vWa[0][0], 0)
        for nt in range(4):
            if nt:
                p.v_xor_b32(v(self.vWa[0][nt]), nt << 5, v(self.vWa[0][0]))
            p.v_add_u32(v(self.vWa[1][nt]), 65536, v(self.vWa[0][nt]))
        p.wait_vm(self.tokW1)
        p.s_barrier()
        p.s_add_u32(s(self.sTmp), s(self.sRGB), s(self.sCB128))
        p.s_add_u32(s(self.sTmp), s(self.sTmp), RDY3_OFF)
        p.s_cmp_eq_u32(s(self.sW), 0)
        p.s_cselect_b32(s(self.sTmp), s(self.sTmp), hex(OOB))
        self.line_store(p, self.sTmp)
        vRa, vRb = V.get(), V.get()
        p.v_accvgpr_read_b32(v(vRb), r(self.aAddr + 0))

        def rdy3_load(z):
            z.buffer_load_dword(v(vRa), v(vRb), s(self.sWS, 4), 0, mods=f"offen offset:{RDY3_OFF - RDY2_OFF} sc1")
        q = sub()
        rdy3_load(q)
        r3l = q.ins
        self.vH = H
        xr, XR = V.get(8), V.get(16)
        vSt = V.get()
        vCsR = V.get()
        q = sub()
        for i in range(4):
            q.v_mov_b32(v(self.vOnes + i), "0x3f803f80")
        q.s_lshl_b32(s(self.sTmp), s(self.sW), 5)
        q.v_xor_b32(v(t), s(self.sTmp), v(self.vWa[1][0]))
        q.v_lshlrev_b32(v(vCsR), 4, v(self.vG))
        q.v_add_u32(v(vCsR), MISC, v(vCsR))
        q.s_lshl_b32(s(self.sTmp), s(self.sW), 6)
        q.v_add_u32(v(vCsW), s(self.sTmp), v(vCsR))
        csf, csc = [A.get(4) for _ in range(16)], V.get(4)
        crd, cmm = self.colsum16(t, vCsW, 0, csf, csc)
        w0 = [[x] for x in q.ins]
        tokW2 = p.new_token()
        w2 = self.w_image(self.vWd16, self.sW2, 0, 1024, R0, tokW2)
        sOut, sOutT = S.get(), S.get()
        q = sub()
        for i in range(8):
            q.v_accvgpr_read_b32(v(xr + i), r(self.aXres + i))
        q.v_accvgpr_read_b32(v(vSt), r(self.aAddr + 1))
        self.transpose4(q, xr)
        for nt in range(4):
            for i in range(2):
                q.v_lshlrev_b32(v(XR + 4 * nt + 2 * i), 16, v(xr + 2 * nt + i))
                q.v_and_b32(v(XR + 4 * nt + 2 * i + 1), "0xffff0000", v(xr + 2 * nt + i))
        q.s_add_u32(s(sOut), s(self.sTile), s(self.sCB2K))
        q.s_add_u32(s(sOut), s(sOut), H_OFF)
        vTm, vTh, vSl = V.get(), V.get(), V.get()
        self.vWd3 = V.get()
        q.v_accvgpr_read_b32(v(vTm), r(self.aAddr + 2))
        q.v_accvgpr_read_b32(v(vTh), r(self.aAddr + 3))
        q.v_lshlrev_b32(v(vSl), 8, v(self.vG))
        q.v_lshl_add_u32(v(vSl), v(self.vJ), 3, v(vSl))
        sSt = S.get()
        q.s_add_u32(s(sSt), s(self.sStat), STH_OFF)
        q.s_add_u32(s(sOutT), s(self.sRGB), s(self.sCB2K))
        q.s_add_u32(s(sOutT), s(sOutT), T_OFF)
        rest = self.gemm64(0, O_OFF, lambda st: self.vL16, H, False,
                           lambda pre: w0 + crd + pre[:8] + self.regroup2(pre[8:], cmm),
                           o["d3"], late=atoms(q.ins), tail=w2, code=0x200,
                           extra_loads=[r3l, self.touch3(self.sW2, 512, o["t2"])])
        for x in csf:
            A.put(x, 4)
        V.put(csc, 4)
        V.put(xr, 8)
        A.put(self.aXres, 8)
        for i in range(0, 16, 2):
            p.v_pk_add_f32(v(H + i, 2), v(H + i, 2), v(XR + i, 2))
        V.put(XR, 16)
        self.cvt_store(H, pk, self.vL16, sOut)
        p.add(interleave(self.stats_partial(H, STH_OFF, vSt), rest[:2]))
        rest = rest[2:]
        self.stamp("p3 stored")
        acc, cs = V.get(16), V.get(16)
        stt = V.get(4)
        q = sub()
        sW3o = S.get()
        q.s_lshl_b32(s(sW3o), s(self.sNB), 8)
        q.s_cmp_lt_u32(s(self.sNB), 14)
        q.s_cselect_b32(s(sW3o), s(sW3o), hex(OOB))
        self.w_dma_voff(q, self.vWd3, 3584, "m16", swz32=True, col=sW3o)
        w0 = atoms(q.ins)

        def ldstat(z):
            z.buffer_load_dwordx2(v(stt, 2), v(vSl), s(self.sWS, 4), s(sSt), mods="offen sc1")
            z.buffer_load_dwordx2(v(stt + 2, 2), v(vSl), s(self.sWS, 4), s(sSt), mods="offen offset:128 sc1")
        q = sub()
        ldstat(q)
        extra = [q.ins]
        mean, rstd = V.get(2), V.get(2)
        cA, cB, cI = V.get(2), V.get(2), V.get(2)
        q = sub()
        q.v_pk_add_f32(v(stt, 2), v(stt, 2), v(stt + 2, 2))
        q.v_permlane32_swap_b32(v(stt), v(stt + 1))
        q.v_add_f32(v(stt), v(stt), v(stt + 1))
        q.v_mov_b32(v(stt + 1), v(stt))
        q.v_permlane16_swap_b32(v(stt), v(stt + 1))
        q.v_add_f32(v(stt), v(stt), v(stt + 1))
        q.v_mov_b32(v(stt + 1), v(stt))
        q.v_permlane32_swap_b32(v(stt), v(stt + 1))
        q.v_mul_f32(v(mean), f2u(-1 / 512), v(stt))
        q.v_mul_f32(v(t), f2u(1 / 512), v(stt + 1))
        q.v_fma_f32(v(t), "-" + v(mean), v(mean), v(t))
        q.v_max_f32(v(t), 0, v(t))
        q.v_add_f32(v(u), f2u(EPS), v(t))
        q.v_rsq_f32(v(rstd), v(u))
        q.v_mov_b32(v(u), f2u(EPS))
        q.v_mul_f32(v(t), v(t), v(rstd))
        q.v_fmac_f32(v(u), v(t), v(rstd))
        q.v_rsq_f32(v(u), v(u))
        q.v_mul_f32(v(u), v(u), v(rstd))
        self.gelu_consts(q, u, cA, cB, cI)
        statq = q.ins
        statc = self.check([stt, stt + 1, stt + 2, stt + 3], ldstat, code=0x380)
        self.tokW3a, self.tokW3b = p.new_token(), p.new_token()
        w3a = self.w_image(self.vWd3, self.sW3, 0, 3584, R1, self.tokW3a)
        vo = [V.get() for _ in range(4)]
        t2, u2 = V.get(), V.get()
        late = []
        for nt in range(4):
            q = sub()
            q.ds_read_b128(v(cs + 4 * nt, 4), v(vCsR), mods=f"offset:{nt*64}")
            late.append(q.ins)
        q = sub()
        q.v_lshlrev_b32(v(u2), 5, v(self.vG))
        q.v_and_b32(v(t2), 1, v(self.vJ))
        q.v_lshl_add_u32(v(u2), v(t2), 4, v(u2))
        late += atoms(q.ins)
        for gam in range(4):
            mag = 1 + gam // 2
            up = gam % 2 == 0
            q = sub()
            q.v_add_u32(v(t2), TH_OFF - T_OFF - (0 if up else 3 * 16384), v(u2))
            late.append(q.ins)
            q = sub()
            q.s_cmp_eq_u32(s(self.sW), 0 if up else 3)
            if up:
                q.s_cselect_b32(s(self.sTmp), mag, 0)
                q.v_cmp_gt_u32(s(self.sM, 2), s(self.sTmp), v(self.vJ))
            else:
                q.s_cselect_b32(s(self.sTmp), 16 - mag, 16)
                q.v_cmp_le_u32(s(self.sM, 2), s(self.sTmp), v(self.vJ))
            late.append(q.ins)
            q = sub()
            q.v_cndmask_b32(v(vo[gam]), v(self.vL16), v(t2), s(self.sM, 2))
            late.append(q.ins)
        q = sub()
        q.wait_vm(tokW2)
        rest = self.gemm64(1, H_OFF, lambda st: self.vL16, acc, False,
                           lambda pre: self.regroup2(w0 + pre[:24], rest) + pre[24:], o["d4"], late=late, tail=w3a,
                           extra_loads=extra, code=0x300, prebar=q.ins, bar2=o["bar2"])
        V.put(t2), V.put(u2), S.put(sW3o)
        p.add(self.rdy_check([vRa], rdy3_load))
        V.put(vRa), V.put(vRb)
        p.add(statc)
        p.add(interleave(statq, rest[:1]))
        rest = rest[1:]
        V.put(stt, 4), V.put(vSl), S.put(sSt)
        for i in range(0, 16, 2):
            p.v_pk_fma_f32(v(acc + i, 2), v(cs + i, 2), v(mean, 2), v(acc + i, 2), mods="op_sel_hi:[1,0,1]")
        tmp = V.get(4)
        g = self.gelu(acc, 16, cA, cB, cI, pk, tmp)
        for k in range(2):
            p.add(interleave(g[40 * k:40 * k + 40], rest[:3]))
            rest = rest[3:]
            p.v_or_b32(v(pk + 4 * k), 1, v(pk + 4 * k))
            p.buffer_store_dwordx4(v(pk + 4 * k, 4), v(vTh), s(self.sWS, 4), s(self.sCB2K), mods=f"offen offset:{k*1024} sc1")
            p.buffer_store_dwordx4(v(pk + 4 * k, 4), v(vTm), s(self.sWS, 4), s(sOutT), mods=self.st(f"offen offset:{k*1024}"))
        self.stamp("p4 stored")
        V.put(tmp, 4), V.put(cs, 16), V.put(acc, 16), V.put(vTm), V.put(vTh), S.put(sOutT)
        for x in (cA, cB, cI):
            V.put(x, 2)
        Y = V.get(16)
        q = sub()
        for i in range(0, 16, 2):
            q.v_pk_add_f32(v(Y + i, 2), v(H + i, 2), v(mean, 2), mods="op_sel_hi:[1,0]")
        for i in range(0, 16, 2):
            q.v_pk_mul_f32(v(Y + i, 2), v(Y + i, 2), v(rstd, 2), mods="op_sel_hi:[1,0]")
        q.s_add_u32(s(sOut), s(self.sTile), s(self.sCB2K))
        q.s_add_u32(s(sOut), s(sOut), X1_OFF)
        w0 = [[x] for x in q.ins]
        q = sub()
        q.wait_vm(self.tokW3a)
        w3b = self.w_image(self.vWd3, self.sW3, 128, 3584, R0, self.tokW3b)
        self.vCsW = vCsW
        late = self.p6_setup()
        rest = self.gemm64(0, T_OFF, lambda st: vo[st // 4], Y, True,
                           lambda pre: self.regroup2(w0 + pre[:8], rest) + pre[8:], o["d5"], late=late, tail=w3b,
                           extra_loads=[self.touch3(self.sW3, 1792, o["t3"])], code=0x400, prebar=q.ins, kind="one")
        V.put(mean, 2), V.put(rstd, 2)
        for x in vo:
            V.put(x)
        self.cvt_store(Y, pk, self.vL16, sOut, x1=True)
        p.add(interleave(self.stats_partial(Y, STX_OFF, vSt), rest[:2]))
        self.pending = rest[2:]
        self.stamp("p5 stored")
        q = sub()
        for i in range(0, 16, 2):
            q.v_pk_add_f32(v(H + i, 2), v(H + i, 2), v(Y + i, 2))
        p.add(interleave(q.ins, self.pending))
        V.put(Y, 16), V.put(pk, 8), V.put(vSt), V.put(vCsR)
        V.put(self.act, 64)
        S.put(sOut)
        for x in self.WB:
            for y in x:
                A.put(y, 4)
        for x in self.vWa[1] + self.vWa[0][1:]:
            V.put(x)
        V.put(self.vWd16)
        V.put(self.vWd3)
        for x in self.sG + [self.sGrp]:
            S.put(x)

    def w4_setup(self, q):
        S, V, A = self.S, self.V, self.A
        self.kseq = [(0, 0), (1, 0), (2, 0), (0, 1), (1, 1), (2, 1), (3, 0), (0, 2), (1, 2), (2, 2), (3, 2),
                     (0, 3), (1, 3), (2, 3)]
        for qp in range(2):
            self.w_dma_voff(q, self.vd4[qp], 1024, "m32", qconst=qp)
        q.v_add_u32(v(self.vd4[2]), 16 * 1024 - 2048, v(self.vd4[0]))
        q.v_add_u32(v(self.vd4[3]), 16 * 1024 - 3072, v(self.vd4[1]))
        q.v_subrev_u32(v(self.vd4[1]), 1024, v(self.vd4[1]))
        self.sStage = S.get()
        self.sW4o = [S.get() for _ in range(4)]
        for m in range(3):
            a_ = self.sW4o[m]
            if self.o["rot"] & 1:
                q.s_and_b32(s(a_), s(self.sRG), 3)
                q.s_mul_i32(s(a_), s(a_), 3)
                q.s_add_u32(s(a_), s(a_), s(self.sW))
                q.s_add_u32(s(a_), s(a_), 4 * m)
                q.s_cmp_ge_u32(s(a_), 12)
                q.s_cselect_b32(s(self.sTmp), 12, 0)
                q.s_sub_u32(s(a_), s(a_), s(self.sTmp))
            else:
                q.s_add_u32(s(a_), s(self.sW), 4 * m)
            q.s_lshl_b32(s(a_), s(a_), 17)
            q.s_add_u32(s(a_), s(a_), s(self.sCB128))
        a_ = self.sW4o[3]
        q.s_lshr_b32(s(a_), s(self.sW), 1)
        q.s_lshl_b32(s(a_), s(a_), 2)
        q.s_and_b32(s(self.sTmp), s(self.sW), 1)
        q.s_add_u32(s(a_), s(a_), s(self.sTmp))
        q.s_add_u32(s(a_), s(a_), 48)
        q.s_lshl_b32(s(a_), s(a_), 15)
        q.s_add_u32(s(a_), s(a_), s(self.sCB128))
        q.s_lshl_b32(s(self.sStage), s(self.sW), 14)
        q.s_add_u32(s(self.sStage), s(self.sStage), R1)
        self.vr4 = [self.vWa[0][0]] + self.vr4
        q.v_lshlrev_b32(v(self.t), 12, v(self.vG))
        q.v_sub_u32(v(self.t), v(self.vWa[0][0]), v(self.t))
        q.v_lshl_add_u32(v(self.t), v(self.vG), 10, v(self.t))
        q.v_add_u32(v(self.vr4[0]), s(self.sStage), v(self.t))
        for nt in range(1, 4):
            q.v_xor_b32(v(self.vr4[nt]), nt << 5, v(self.vr4[0]))
        self.tok4 = [self.p.new_token() for _ in range(14)]

    def w4_dma(self, l):
        m, i = self.kseq[l]
        sb, c = self.sW4o[m], i * 32768
        return [self.dma(self.vd4[qq], self.sW4, (sb, c) if qq == 0 else None,
                         (self.sStage, (l % 4) * 4096) if qq == 0 else None, imm=qq * 1024, token=self.tok4[l])
                for qq in range(4)]

    def w4_read(self, l):
        out = []
        for nt in range(4):
            for h in range(2):
                q = self.p.sub()
                if nt == 0 and h == 0:
                    q.wait_vm(self.tok4[l])
                q.ds_read_b64_tr_b16(r(self.W4[l][nt] + 2 * h, 2), v(self.vr4[nt]),
                                     mods=f"offset:{(l%4)*4096 + h*512}", token=self.tok4[l])
                out.append(q.ins)
        return out

    def w4_stream(self):
        out = []
        for l in range(3):
            out += self.w4_dma(l)
        for l in range(14):
            if l + 3 < 14:
                d = self.w4_dma(l + 3)
                if l >= 1:
                    q = self.p.sub()
                    q.wait_ds(self.tok4[l - 1])
                    d[0] = q.ins + d[0]
                out += d
            rd = self.w4_read(l)
            out += [rd[0] + rd[1], rd[2] + rd[3], rd[4] + rd[5], rd[6] + rd[7]]
        return out

    def p6_setup(self):
        p, S, V = self.p, self.S, self.V
        t, u = self.t, self.u
        mean, cA, cB, cI = self.c6
        vt, vs, vcs, cb_ = mean + 1, cA + 1, cB + 1, cI + 1
        wa = self.wa6
        self.ca6 = self.tmp6
        q = p.sub()
        q.v_and_b32(v(t), 1, v(self.vG))
        q.v_add_u32(v(t), s(self.sT2), v(t))
        q.v_lshrrev_b32(v(u), 5, v(0))
        q.v_lshlrev_b32(v(vt), 14, v(t))
        q.v_lshl_add_u32(v(vt), v(u), 8, v(vt))
        q.v_lshl_add_u32(v(vt), v(self.vJ), 4, v(vt))
        q.v_lshlrev_b32(v(vs), 10, v(t))
        q.v_lshl_add_u32(v(vs), v(u), 9, v(vs))
        q.v_lshl_add_u32(v(vs), v(self.vJ), 3, v(vs))
        q.v_lshlrev_b32(v(vcs), 4, v(u))
        q.v_add_u32(v(vcs), MISC + 256, v(vcs))
        q.v_bfe_u32(v(t), v(0), 2, 2)
        q.v_and_b32(v(u), 1, v(self.vG))
        q.v_and_b32(v(wa[1][0]), 2, v(t))
        q.v_xor_b32(v(u), v(u), v(wa[1][0]))
        q.v_lshlrev_b32(v(u), 5, v(u))
        q.v_lshl_add_u32(v(u), v(t), 7, v(u))
        q.v_lshrrev_b32(v(t), 5, v(0))
        q.v_lshl_add_u32(v(u), v(t), 12, v(u))
        q.v_and_b32(v(t), 3, v(0))
        q.v_lshl_add_u32(v(wa[1][0]), v(t), 3, v(u))
        q.v_xor_b32(v(wa[1][1]), 64, v(wa[1][0]))
        for m in range(2):
            q.v_add_u32(v(wa[0][m]), 65536, v(wa[1][m]))
        self.w_read_addr16(q, cb_, None, 0, swz32=True)
        q.v_add_u32(v(self.ca6), 65536, v(cb_))
        self.w4_setup(q)
        self.sFl, self.sFlo = S.get(), S.get()
        q.s_and_b32(s(self.sFl), s(self.sRG), -2)
        q.s_mul_i32(s(self.sFl), s(self.sFl), RGS)
        q.s_add_u32(s(self.sFl), s(self.sFl), UFL_OFF)
        q.s_lshl_b32(s(self.sFlo), s(self.sNB), 2)
        q.s_add_u32(s(self.sFlo), s(self.sFlo), s(self.sW))
        q.s_lshl_b32(s(self.sFlo), s(self.sFlo), 2)
        q.s_add_u32(s(self.sFlo), s(self.sFlo), s(self.sFl))
        return atoms(q.ins)

    def u_flag_addr(self, q, vFl, t):
        q.v_bfe_u32(v(t), v(0), 1, 2)
        q.v_mov_b32(v(vFl), s(self.sW4o[0]))
        for m in range(1, 4):
            q.v_cmp_eq_u32("vcc", m, v(t))
            q.v_mov_b32(v(self.vTmp), s(self.sW4o[m]))
            q.v_cndmask_b32(v(vFl), v(vFl), v(self.vTmp), "vcc")
        q.v_lshrrev_b32(v(vFl), 17, v(vFl))
        q.v_and_b32(v(t), 1, v(0))
        q.v_lshl_add_u32(v(vFl), v(vFl), 2, v(t))
        q.s_and_b32(s(self.sTmp), s(self.sRG), 1)
        q.s_lshl_b32(s(self.sTmp), s(self.sTmp), 1)
        q.v_add_u32(v(vFl), s(self.sTmp), v(vFl))
        q.v_lshlrev_b32(v(vFl), 2, v(vFl))

    def u_flag_load(self, q, k):
        q.buffer_load_dword(v(self.vFa), v(self.vFl), s(self.sWS, 4), s(self.sFl), mods=f"offen offset:{256*k} sc1")

    def u_flag_pub(self, q, k, tok):
        q.wait_vm(tok)
        q.v_mov_b32(v(self.vTmp), s(self.sWord))
        q.s_mov_b64("exec", 1)
        q.buffer_store_dword(v(self.vTmp), "off", s(self.sWS, 4), s(self.sFlo), mods=self.st(f"offset:{256*k}"))
        q.s_mov_b64("exec", -1)

    def phase6(self):
        p, S, V, A, o = self.p, self.S, self.V, self.A, self.o
        t, u = self.t, self.u
        sub = p.sub
        Lidle, Ljoin = self.lab("p6idle"), self.lab("p6join")
        X1 = V.get(128)
        acc = [V.get(16) for _ in range(4)]
        stt, tmp = V.get(8), self.tmp6
        mean, cA, cB, cI = self.c6
        vt, vs, vcs, cb_ = mean + 1, cA + 1, cB + 1, cI + 1
        wa = self.wa6
        self.W4 = [[A.get(4) for _ in range(4)] for _ in range(14)]
        p.s_cmp_ge_u32(s(self.sNB), 14)
        p.s_cbranch_scc1(Lidle)
        c = sub()
        c.label(Lidle)
        c.add(self.touch3(self.sW4, 1792, o["t4"] >= 0))
        c.wait(vm=0, lgkm=0)
        c.s_barrier()
        c.add(flat(self.w4_stream()))
        self.p7_regs(X1)
        self.u_flag_addr(c, self.vFl, self.vFa)
        self.u_flag_load(c, 0)
        c.add(flat(self.p7_setup()))
        c.add(self.rdy_check([self.vFa], lambda z: self.u_flag_load(z, 0)))
        for n in range(o["pl"]):
            self.p7_ld(c, n)
        if o["fbl"] < 0:
            self.u_flag_load(c, 1)
        c.wait(vm=0, lgkm=0)
        c.s_branch(Ljoin)
        self.cold.append(c.ins)
        sB = self.sAct
        for k in range(4):
            p.s_add_u32(s(sB[k]), s(self.sSrc), X1_OFF + 4096 * k)
        NB = o.get("nb6", 6)
        Wr = [A.get(4) for _ in range(NB)]
        seq = [(i, ks) for ks in range(32) for i in range(2)] + [(2, ks) for ks in range(32)] + \
              [(3, ks) for ks in range(32)]

        def wread(z, n):
            i, ks = seq[n]
            for h in range(2):
                z.ds_read_b64_tr_b16(r(Wr[n % NB] + 2 * h, 2), v(wa[i // 2][i % 2]),
                                     mods=f"offset:{self.img(ks//2) + (ks%2)*8192 + h*512}")
        q = sub()
        for n in range(NB - 1):
            wread(q, n)
        csf = [x for l in range(10, 14) for x in self.W4[l]]
        crd, cmm = self.colsum16(self.ca6, self.vCsW, 256, csf, acc[3])
        window = crd + [[x] for x in q.ins] + cmm
        vFa, vFb = acc[2], acc[2] + 1
        p.s_and_b32(s(self.sTmp), s(self.sRG), -2)
        p.s_add_u32(s(self.sTmp), s(self.sTmp), s(self.sW))
        p.s_add_u32(s(self.sTmp), s(self.sTmp), 2)
        p.s_min_u32(s(self.sTmp), s(self.sTmp), 31)
        p.s_mul_i32(s(self.sTmp), s(self.sTmp), RGS)
        p.s_add_u32(s(self.sTmp), s(self.sTmp), RDY3_OFF)
        p.v_and_b32(v(vFb), 7, v(0))
        p.v_lshlrev_b32(v(vFb), 7, v(vFb))
        p.v_add_u32(v(vFb), s(self.sTmp), v(vFb))

        def far_load(z):
            z.buffer_load_dword(v(vFa), v(vFb), s(self.sWS, 4), 0, mods="offen sc1")
        far_load(p)

        def ld(z, ks):
            z.buffer_load_dwordx4(v(X1 + 4 * ks, 4), v(vt), s(self.sWS, 4), s(sB[ks // 8]),
                                  mods=f"offen offset:{(ks%8)*512} sc1")

        def ldi(ks):
            z = sub()
            ld(z, ks)
            return z.ins
        LA = o["la6"]
        p.add(flat(self.paced(window, [ldi(k) for k in range(LA)], o["d6"], o["gap6"])))
        self.stamp("p6 window")
        sSt = S.get()

        def ldstat(z):
            z.s_add_u32(s(sSt), s(self.sSrc), STX_OFF)
            for k in range(4):
                z.buffer_load_dwordx2(v(stt + 2 * k, 2), v(vs), s(self.sWS, 4), s(sSt), mods=f"offen offset:{k*128} sc1")

        def mm(n):
            z = sub()
            i, ks = seq[n]
            if n + NB - 1 < len(seq):
                wread(z, n + NB - 1)
            z.v_mfma_f32_32x32x16_bf16(v(acc[i], 16), r(Wr[n % NB], 4), v(X1 + 4 * ks, 4), v(acc[i], 16) if ks else 0)
            return z.ins
        fifo = list(range(LA))

        def chk(ks):
            after = fifo[fifo.index(ks + 1) + 1:]
            more = [k for k in after if k >= 0]
            return self.check3([X1 + 4 * ks, X1 + 4 * ks + 4], lambda c: [ld(c, k) for k in [ks, ks + 1] + more],
                               len(more) if len(more) == len(after) else 0, 0x500 + ks, "x1")
        q = sub()
        q.add(self.check([stt + i for i in range(8)], ldstat, code=0x580))
        q.v_add_f32(v(stt), v(stt), v(stt + 2))
        q.v_add_f32(v(stt + 1), v(stt + 1), v(stt + 3))
        q.v_add_f32(v(stt + 4), v(stt + 4), v(stt + 6))
        q.v_add_f32(v(stt + 5), v(stt + 5), v(stt + 7))
        q.v_add_f32(v(stt), v(stt), v(stt + 4))
        q.v_add_f32(v(stt + 1), v(stt + 1), v(stt + 5))
        q.v_mov_b32(v(stt + 2), v(stt))
        q.v_mov_b32(v(stt + 3), v(stt + 1))
        q.v_permlane32_swap_b32(v(stt), v(stt + 2))
        q.v_permlane32_swap_b32(v(stt + 1), v(stt + 3))
        q.v_add_f32(v(stt), v(stt), v(stt + 2))
        q.v_add_f32(v(stt + 1), v(stt + 1), v(stt + 3))
        q.v_mul_f32(v(mean), f2u(-1 / 512), v(stt))
        q.v_mul_f32(v(t), f2u(1 / 512), v(stt + 1))
        q.v_fma_f32(v(t), "-" + v(mean), v(mean), v(t))
        q.v_max_f32(v(t), 0, v(t))
        q.v_add_f32(v(t), f2u(EPS), v(t))
        q.v_rsq_f32(v(t), v(t))
        self.gelu_consts(q, t, cA, cB, cI)
        vst = vs
        q.v_accvgpr_read_b32(v(vst), r(self.aAddr + 4))
        nchk = [k for k, x in enumerate(q.ins) if x.cls == "label"][0] + 1
        statq = [q.ins[:nchk]] + [[x] for x in q.ins[nchk:]]
        crd, cmm = self.colsum16(cb_, self.vCsW, 512, csf, acc[3])
        b3, sq0 = o["b3"], o["sq0"]

        p.add(flat(chk(0)))
        if o.get("stg"):
            self.stamp("c0")
        c3 = None
        for ks in range(32):
            if o.get("stg") and ks in (8, 16, 24):
                self.stamp("s%d" % ks)
            if ks == b3:
                p.wait_vm(self.tokW3b)
                p.s_barrier()
            p.add(mm(2 * ks))
            if ks + LA < 32:
                p.add(ldi(ks + LA))
                fifo.append(ks + LA)
            if ks == 4:
                p.add(self.rdy_check([vFa], far_load))
            if ks == o["stl"]:
                ldstat(p)
                fifo.append(-1)
            if ks == o["t4"]:
                p.add(self.touch3(self.sW4, 1792, 1))
                fifo.append(-1)
            if ks >= b3:
                p.add(flat(crd[:4]))
                crd = crd[4:]
            if ks % 2 == 1 and ks < 31:
                c3 = chk(ks + 1)
                p.add(c3[0] + c3[1])
            elif ks >= sq0:
                k = -(-len(statq) // ((33 - ks) // 2)) if ks > sq0 else 1
                p.add(flat(statq[:k]))
                statq = statq[k:]
            p.add(mm(2 * ks + 1))
            if ks % 2 == 1 and ks < 31:
                p.add(c3[2])
            if ks >= b3 + 2:
                k = -(-len(cmm) // (32 - ks))
                p.add(flat(cmm[:k]))
                cmm = cmm[k:]
        assert not (crd or cmm or statq)
        V.put(self.vL128), S.put(self.sPf), S.put(self.sGW)
        self.stamp("p6 pass1")
        p.wait(lgkm=0)
        p.s_barrier()
        cs = stt

        def epi(i, packed):
            z = sub()
            for half in range(2):
                for gg in range(2):
                    z.ds_read_b128(v(cs + 4 * gg, 4), v(vcs), mods=f"offset:{i*128 + (2*half+gg)*32}")
                a0 = acc[i] + 8 * half
                if packed:
                    for k in range(0, 8, 2):
                        z.v_pk_fma_f32(v(a0 + k, 2), v(cs + k, 2), v(mean, 2), v(a0 + k, 2), mods="op_sel_hi:[1,0,1]")
                else:
                    for k in range(8):
                        z.v_fmac_f32(v(a0 + k), v(cs + k), v(mean))
                z.add(self.gelu(a0, 8, cA, cB, cI, a0, tmp, packed))
                z.buffer_store_dwordx4(v(a0, 4), v(vst), s(self.sWS, 4), s(self.sU),
                                       mods=self.st(f"offen offset:{i*1024 + half*512}"), token=self.tokU[max(i - 1, 0)])
            return [[x] for x in z.ins]
        self.tokU = [p.new_token() for _ in range(3)]
        w4 = self.w4_stream()
        n1, n2, nm1 = o["w4n1"], o["w4n2"], o["nm1"]
        f2 = self.regroup2(epi(0, False) + epi(1, False), w4[:n1])
        p.add(interleave([mm(n) for n in range(64, 64 + nm1)], f2))
        if o.get("stg"):
            self.stamp("e01")
        f3 = self.regroup2(w4[n1:n1 + n2], self.p7_setup())
        mms = [mm(n) for n in range(64 + nm1, 128)]

        def one(fn):
            q = sub()
            fn(q)
            return q.ins
        assert o["fap"] >= 98 and o["fal"] > o["fap"]
        mms[o["fap"] - 64 - nm1] += one(lambda q: self.u_flag_addr(q, self.vFl, self.vFa)) + \
            one(lambda q: self.u_flag_pub(q, 0, self.tokU[0]))
        if o["fal"] < 128:
            mms[o["fal"] - 64 - nm1] += one(lambda q: self.u_flag_load(q, 0))
        seq3 = interleave(mms, f3)
        k98 = [k for k, x in enumerate(seq3) if x.cls == "mfma"][98 - 64 - nm1]
        assert not any(x.wr & {("v", X1 + i) for i in range(8)} for x in seq3[:k98])
        p.add(seq3)
        self.stamp("p6 gemm")
        p.wait(lgkm=0)
        p.s_barrier()
        tail = self.regroup2(epi(2, True) + epi(3, True), w4[n1 + n2:])
        ex = {}

        def at(pos, fn):
            ex.setdefault(min(pos, len(tail)), []).append(one(fn))
        at(len(tail) // 2 + o["fbp"], lambda q: self.u_flag_pub(q, 1, self.tokU[1]))
        if o["fal"] >= 128:
            at(o["fal"] - 128, lambda q: self.u_flag_load(q, 0))
        at(o["fac"], lambda q: q.add(self.rdy_check([self.vFa], lambda z: self.u_flag_load(z, 0))))
        for n in range(o["pl"]):
            at(o["fac"] + 1 + n * o["plg"], lambda q: self.p7_ld(q, n))
        if o["fbl"] < 0:
            at(len(tail) + 1 + o["fbl"], lambda q: self.u_flag_load(q, 1))
        print("p6 tail items", len(tail), "w4 items", len(w4), file=sys.stderr)
        tail = [y for k in range(len(tail) + 1) for y in ex.get(k, []) + tail[k:k + 1]]
        p.add(flat(tail))
        p.label(Ljoin)
        self.stamp("p6 stored")
        for x in wa[0] + wa[1] + [self.vCsW] + self.vd4 + self.vr4:
            V.put(x)
        V.put(tmp, 4), V.put(stt, 8), V.put(self.vOnes, 4)
        for x in Wr:
            A.put(x, 4)
        for x in acc:
            V.put(x, 16)
        for x in (mean, cA, cB, cI):
            V.put(x, 2)
        S.put(sSt)

    @staticmethod
    def regroup2(main, fill):
        out = []
        n, k = len(main), 0
        for i, x in enumerate(main):
            out.append(x)
            tgt = len(fill) * (i + 1) // n
            while k < tgt:
                out.append(fill[k])
                k += 1
        return out

    def p7_regs(self, X1):
        self.U = [X1 + 16 + 4 * i for i in range(28)]
        self.vU = [X1 + 4 + i for i in range(4)]
        self.vFl, self.vFa, self.vRw = X1, X1 + 1, X1 + 2
        self.sLd = [self.S.get() for _ in range(3)]
        self.order7 = [(i, l) for i in range(4) for l in range(7)] + [(i, l) for i in range(3) for l in range(7, 10)] + \
                      [(i, l) for i in range(3) for l in range(10, 14)] + [(3, l) for l in range(7, 14)]

    def p7_setup(self):
        p = self.p.sub()
        sT = self.sAct
        for m in range(4):
            p.s_lshr_b32(s(sT[m]), s(self.sW4o[m]), 19)
            p.s_lshl_b32(s(sT[m]), s(sT[m]), 16)
            p.s_bfe_u32(s(self.sLd[0]), s(self.sW4o[m]), (4 << 16) | 15)
            p.s_lshl_b32(s(self.sLd[0]), s(self.sLd[0]), 10)
            p.s_add_u32(s(sT[m]), s(sT[m]), s(self.sLd[0]))
        out = [[x] for x in p.ins]
        p = self.p.sub()
        for m in range(4):
            if self.o.get("fakeu"):
                p.s_and_b32(s(sT[m]), s(sT[m]), 0x3fff)
                p.s_add_u32(s(sT[m]), s(sT[m]), X1_OFF)
            p.v_add_u32(v(self.vU[m]), s(sT[m]), v(self.vL16))
        out.append(p.ins)
        p = self.p.sub()
        for i in range(4):
            d = self.sLd[i] if i < 3 else sT[3]
            if i < 3:
                p.s_add_u32(s(d), s(self.sW), i + 1)
                p.s_and_b32(s(d), s(d), 3)
            p.s_lshl_b32(s(d), s(d if i < 3 else self.sW), 14)
            p.s_add_u32(s(sT[i]), s(d), s(self.sRGB))
        return out + [[x] for x in p.ins]

    def p7_ld(self, z, n):
        i, l = self.order7[n]
        m, b = self.kseq[l]
        z.buffer_load_dwordx4(v(self.U[n % 28], 4), v(self.vU[m]), s(self.sWS, 4), s(self.sAct[i]),
                              mods=f"offen offset:{b*1024} sc1")

    def phase7(self):
        p, S, V, A, o = self.p, self.S, self.V, self.A, self.o
        t, u = self.t, self.u
        sub = p.sub
        U, vRw, sLd, order = self.U, self.vRw, self.sLd, self.order7
        acc = [V.get(16) for _ in range(3)] + [self.vH]
        nxt = o["pl"]
        while nxt < o["la7"]:
            self.p7_ld(p, nxt)
            nxt += 1
        self.stamp("p7 window")
        red, adds = [], []
        seen = 28
        for n in range(56):
            i, l = order[n]
            if n in (7, 14, 21, 28, 37, 45, 49) and o.get("st7"):
                self.stamp("p7.%d" % n)
            q = sub()
            for nt in range(4):
                q.v_mfma_f32_16x16x32_bf16(v(acc[i] + 4 * nt, 4), r(self.W4[l][nt], 4), v(U[n % 28], 4),
                                           v(acc[i] + 4 * nt, 4) if (l or i == 3) else 0)
            slot = [[], [], [], []]
            for k, (ck, hi) in enumerate(((o["fbc"], 37), (o["fcc"], 56))):
                if n == ck:
                    slot[0] += self.rdy_check([self.vFa], lambda c, k=k: self.u_flag_load(c, k + 1))
                    seen = hi
            for k in (0, 2):
                if nxt < min(seen, n + 28) and (k == 0 or nxt - n < o["lead"]) and n >= o["ls0"]:
                    z = sub()
                    self.p7_ld(z, nxt)
                    slot[k] += z.ins
                    nxt += 1
            assert nxt > n + 1 or nxt == 56
            if n == o["fcp"]:
                z = sub()
                self.u_flag_pub(z, 2, self.tokU[2])
                slot[2] += z.ins
            for k, ck in enumerate((o["fbl"], o["fcl"])):
                if n == ck:
                    z = sub()
                    self.u_flag_load(z, k + 1)
                    slot[1] += z.ins
            if n in (41, 45, 49):
                j = (n - 41) // 4
                z = sub()
                z.v_add_u32(v(vRw), s(sLd[j]), v(self.vL16))
                red = [z.ins]
                for nt in range(4):
                    z = sub()
                    z.ds_write_b128(v(vRw), v(acc[j] + 4 * nt, 4), mods=f"offset:{j*4096 + nt*1024}")
                    red.append(z.ins)
            for k in (1, 2, 3):
                if red and (k == 3 or n > 49 or (k == 2 and len(red) < 4)):
                    slot[k] += red.pop(0)
            if n == o["rbar"]:
                z = sub()
                z.s_lshl_b32(s(self.sTmp), s(self.sW), 14)
                z.v_add_u32(v(vRw), s(self.sTmp), v(self.vL16))
                z.wait(lgkm=0)
                z.s_barrier()
                slot[0] += z.ins
                red = []
                for nt in range(4):
                    z = sub()
                    for sw in range(3):
                        z.ds_read_b128(v(acc[sw] + 4 * nt, 4), v(vRw), mods=f"offset:{sw*4096 + nt*1024}")
                    slot[nt] += z.ins
                z = sub()
                for nt in range(4):
                    for sw in (1, 2):
                        for e in range(4):
                            z.v_add_f32(v(acc[0] + 4 * nt + e), v(acc[0] + 4 * nt + e), v(acc[sw] + 4 * nt + e))
                adds = z.ins
            if n >= o["radd"]:
                for k in range(4):
                    slot[k] += adds[:2]
                    adds = adds[2:]
            for nt in range(4):
                p.add(q.ins[nt])
                p.add(slot[nt])
        p.add(adds)
        self.stamp("p7 gemm")
        H = self.vH
        p.v_lshlrev_b32(v(t), 10, v(self.vJ))
        p.v_lshl_add_u32(v(t), v(self.vG), 5, v(t))
        p.s_lshl_b32(s(self.sTmp), s(self.sRG), 2)
        p.s_add_u32(s(self.sTmp), s(self.sTmp), s(self.sW))
        p.s_lshl_b32(s(self.sTmp), s(self.sTmp), 14)
        p.s_add_u32(s(self.sTmp), s(self.sTmp), s(self.sCB128))
        for i in range(0, 16, 2):
            p.v_pk_add_f32(v(H + i, 2), v(H + i, 2), v(acc[0] + i, 2))
        pk = V.get(8)
        for i in range(8):
            p.v_cvt_pk_bf16_f32(v(pk + i), v(H + 2 * i), v(H + 2 * i + 1))
        self.transpose4(p, pk)
        p.buffer_store_dwordx4(v(pk, 4), v(t), s(self.sOUT, 4), s(self.sTmp), mods="offen")
        p.buffer_store_dwordx4(v(pk + 4, 4), v(t), s(self.sOUT, 4), s(self.sTmp), mods="offen offset:16")
        self.stamp("end")
        if self.o.get("stamps"):
            p.s_lshl_b32(s(self.sTmp), s(2), 2)
            p.s_add_u32(s(self.sTmp), s(self.sTmp), s(self.sW))
            p.s_lshl_b32(s(self.sTmp), s(self.sTmp), 8)
            p.s_add_u32(s(self.sTmp), s(self.sTmp), WS_BYTES)
            p.s_memrealtime(s(self.sT0, 2))
            p.wait(lgkm=0)
            p.v_writelane_b32(v(self.vStamp), s(self.sT0), 63)
            p.v_writelane_b32(v(self.vStamp), s(self.sSpin), 61)
            p.v_writelane_b32(v(self.vStamp), int(self.fast), 60)
            p.v_lshlrev_b32(v(t), 2, v(0))
            p.buffer_store_dword(v(self.vStamp), v(t), s(self.sWS, 4), s(self.sTmp), mods="offen")

    def build(self):
        p, S = self.p, self.S
        self.prologue()
        self.sHalfMask, self.sQMask, self.sM = S.get(2, 2), S.get(2, 2), S.get(2, 2)
        self.phase1()
        self.phase2()
        keep = {k: copy.deepcopy(getattr(self, k)) for k in ("V", "A", "S")}
        ns = self.nstamp
        for fast in (True, False):
            self.fast = fast
            if not fast:
                for k, x in keep.items():
                    setattr(self, k, x)
                self.nstamp = ns
                p.label("L_slow")
            self.phase345()
            self.phase6()
            self.phase7()
            if fast:
                p.label("L_end")
                self.low = (self.V.low, self.A.low, self.S.low)
            p.s_endpgm()
            for c in self.cold:
                p.add(c)
            self.cold = []
        body = p.finalize(self.o['cl'], self.o['hw'])
        hdr = open("cdna_kernels/" + NAME + ".s.ref").read().split("; Override launch")[0]
        return f"""{hdr}; @launch grid=(256,1,1) block=(256,1,1) lds=163840
.amdgcn_target "amdgcn-amd-amdhsa--gfx950"
.text
.globl {NAME}_kernel
.p2align 8
.type {NAME}_kernel,@function
{NAME}_kernel:
{body}
.section .rodata,"a"
.p2align 6
.amdhsa_kernel {NAME}_kernel
  .amdhsa_next_free_vgpr 512
  .amdhsa_next_free_sgpr 102
  .amdhsa_accum_offset 256
  .amdhsa_group_segment_fixed_size 0
  .amdhsa_kernarg_size 88
  .amdhsa_user_sgpr_count 2
  .amdhsa_user_sgpr_kernarg_segment_ptr 1
  .amdhsa_system_sgpr_workgroup_id_x 1
  .amdhsa_float_denorm_mode_32 3
.end_amdhsa_kernel
"""


if __name__ == "__main__":
    opts = {}
    out = None
    for x in sys.argv[1:]:
        if x.startswith("-o"):
            out = x[2:]
        else:
            k, _, val = x.partition("=")
            opts[k] = (int(val) if val.lstrip('-').isdigit() else val) if val else 1
    g = Gen(opts)
    text = g.build()
    open(out or "cdna_kernels/" + NAME + ".s", "w").write(text)
    if opts.get("stamps"):
        open((out or NAME) + ".stamps", "w").write("\n".join(g.stamp_names))
    print("min free V/A/S", g.low, "bytes", len(text), file=sys.stderr)
```
